```python
import torch

def _softmax(x, axis=-1):
    return torch.softmax(x, dim=axis)
def _gelu(x):
    return torch.nn.functional.gelu(x, approximate="tanh")
def _silu(x):
    return torch.nn.functional.silu(x)
def _sigmoid(x):
    return torch.sigmoid(x)
def _layernorm(x, axis=-1, eps=1e-5):
    m = x.mean(dim=axis, keepdim=True)
    v = x.var(dim=axis, keepdim=True, unbiased=False)
    return (x - m) / torch.sqrt(v + eps)
def _scatter_add(tgt, idx, src, axis=0):
    return tgt.clone().index_add_(axis, idx, src)
def _segment_sum(src, seg, n):
    out = torch.zeros((n,) + src.shape[1:], dtype=src.dtype)
    return out.index_add_(0, seg, src)
def _pad(x, pw):
    flat = tuple(v for pair in reversed(pw) for v in pair)
    return torch.nn.functional.pad(x, flat)

kernel_name = 'recurrent_scan__linear_attn_block__glu_gated_geglu__prompt'

def setup_inputs():

    _w = (lambda a: (lambda t: t.to(torch.bfloat16) if t.is_floating_point() else t)(torch.as_tensor(a)))
    def _A_setup():
        B, S, D = 1, 2048, 512
        return {
            "x": _w((lambda *s: torch.randn(*s, dtype=torch.bfloat16) * 0.05)(B, S, D)),
            "wqkv": _w((lambda *s: torch.randn(*s, dtype=torch.bfloat16) * 0.8)(D, 3 * D)),
            "wo": _w((lambda *s: torch.randn(*s, dtype=torch.bfloat16) * 0.8)(D, D)),
        }
    _A_in = _A_setup()

    def _B_setup():
        B, S, Dm, Df = 1, 2048, 512, 1792
        return {
            "x": _w((lambda *s: torch.randn(*s, dtype=torch.bfloat16) * 0.05)(B, S, Dm)),
            "w_gate": _w((lambda *s: torch.randn(*s, dtype=torch.bfloat16) * 0.2)(Dm, Df) * (Dm ** -0.5)),
            "w_up": _w((lambda *s: torch.randn(*s, dtype=torch.bfloat16) * 0.2)(Dm, Df) * (Dm ** -0.5)),
            "w_down": _w((lambda *s: torch.randn(*s, dtype=torch.bfloat16) * 0.2)(Df, Dm) * (Df ** -0.5)),
        }
    _B_in = _B_setup()

    return {
        "A_x": _A_in["x"],
        "A_wqkv": _A_in["wqkv"],
        "A_wo": _A_in["wo"],
        "B_x": _B_in["x"],
        "B_w_gate": _B_in["w_gate"],
        "B_w_up": _B_in["w_up"],
        "B_w_down": _B_in["w_down"],
    }

def reference(A_x, A_wqkv, A_wo, B_x, B_w_gate, B_w_up, B_w_down):
    def _A_ref(x, wqkv, wo):
        B, S, D = x.shape
        H = 32; Dh = D // H
        qkv = (lambda x, *d: x.permute(*d))((x @ wqkv).reshape(B, S, 3, H, Dh), 2, 0, 3, 1, 4)
        q, k, v = qkv[0], qkv[1], qkv[2]
        phi = lambda t: torch.where(t > 0, t + 1, torch.exp(t)) + 1e-6
        pq, pk = phi(q), phi(k)
        kv = torch.einsum("bhsd,bhse->bhde", pk, v)
        z = torch.einsum("bhsd->bhd", pk)
        num = torch.einsum("bhqd,bhde->bhqe", pq, kv)
        den = torch.einsum("bhqd,bhd->bhq", pq, z)[..., None] + 1e-6
        o = num / den
        return (lambda x, *d: x.permute(*d))(o, 0, 2, 1, 3).reshape(B, S, D) @ wo

    def _B_ref(x, w_gate, w_up, w_down):
        g = torch.einsum("bsd,df->bsf", x, w_gate)
        u = torch.einsum("bsd,df->bsf", x, w_up)
        h = _gelu(g) * u
        return torch.einsum("bsf,fd->bsd", h, w_down)

    x = A_x
    xn = _layernorm(x, axis=-1)
    s = _A_ref(xn, A_wqkv, A_wo)
    g = _silu(_B_ref(xn, B_w_gate, B_w_up, B_w_down))
    return x + s * g
```

```python
import re

def vr(n, cnt=1):
    return f"v{n}" if cnt == 1 else f"v[{n}:{n+cnt-1}]"
def sr(n, cnt=1):
    return f"s{n}" if cnt == 1 else f"s[{n}:{n+cnt-1}]"

_REG = re.compile(r"^(v|s|a)(?:(\d+)|\[(\d+):(\d+)\])$")
def regs_of(op):
    op = op.strip()
    if op.startswith("-"): op = op[1:]
    if op.startswith("abs(") and op.endswith(")"): op = op[4:-1]
    if op.startswith("|") and op.endswith("|"): op = op[1:-1]
    if op == "vcc": return {("s", "vcc")}
    if op == "exec": return {("s", "exec")}
    if op == "m0": return {("s", "m0")}
    if op == "scc": return {("s", "scc")}
    m = _REG.match(op)
    if not m: return set()
    k = m.group(1)
    if m.group(2) is not None: return {(k, int(m.group(2)))}
    return {(k, i) for i in range(int(m.group(3)), int(m.group(4)) + 1)}

TRANS = ("v_exp_f32", "v_log_f32", "v_rcp_f32", "v_rsq_f32", "v_sqrt_f32", "v_sin_f32", "v_cos_f32")

class Inst:
    __slots__ = ("text", "mn", "ops", "w", "r", "kind", "passes", "mods", "weightless", "note")
    def __init__(self, text):
        self.text = text
        t = text.split(";")[0].strip()
        parts = t.split(None, 1)
        self.mn = parts[0]
        rest = parts[1] if len(parts) > 1 else ""
        ops, cur, depth = [], "", 0
        for ch in rest:
            if ch == "[": depth += 1
            if ch == "]": depth -= 1
            if ch == "," and depth == 0:
                ops.append(cur.strip()); cur = ""
            else: cur += ch
        if cur.strip(): ops.append(cur.strip())
        mods = ""
        if ops:
            sp = ops[-1].split(None, 1)
            if len(sp) > 1:
                ops[-1] = sp[0]; mods = sp[1]
        self.ops, self.mods = ops, mods
        self.weightless = False
        self.passes = 0
        m = re.search(r"offset:(-?\d+)", mods)
        if m:
            o = int(m.group(1))
            if self.mn.startswith("buffer_"): assert 0 <= o <= 4095, text
            if self.mn.startswith("global_"): assert -4096 <= o <= 4095, text
            if self.mn.startswith("ds_"): assert 0 <= o <= 65535, text
        self.classify()
    def classify(self):
        mn, ops = self.mn, self.ops
        R = lambda i: regs_of(ops[i]) if i < len(ops) else set()
        allr = lambda a: set().union(*[regs_of(o) for o in ops[a:]]) if len(ops) > a else set()
        w, r = set(), set()
        if mn.startswith("v_mfma"):
            self.kind = "mfma"
            self.passes = 8 if "32x32" in mn else 4
            w = R(0); r = R(1) | R(2) | R(3)
        elif mn.startswith("v_cmp"):
            self.kind = "valu"; w = R(0); r = allr(1)
            if mn.startswith("v_cmpx"): w |= {("s", "exec")}
        elif mn.startswith("v_readfirstlane") or mn.startswith("v_readlane"):
            self.kind = "valu"; w = R(0); r = allr(1)
        elif mn.startswith("v_permlane") and "swap" in mn:
            self.kind = "valu"; w = R(0) | R(1); r = R(0) | R(1)
        elif mn.startswith("v_cndmask"):
            self.kind = "valu"; w = R(0); r = allr(1)
            if len(ops) == 3: r |= {("s", "vcc")}
        elif mn.startswith(("v_add_co", "v_sub_co", "v_addc_co", "v_subb_co")):
            self.kind = "valu"; w = R(0) | R(1); r = allr(2)
        elif mn.startswith("v_"):
            self.kind = "valu"; w = R(0); r = allr(1)
            if mn.startswith(("v_fmac", "v_dot2c", "v_writelane")) or "dpp" in mn or "row_" in self.mods or "quad_perm" in self.mods: r |= R(0)
            if "sdwa" in mn and "UNUSED_PRESERVE" in self.mods: r |= R(0)
        elif mn.startswith("ds_"):
            self.kind = "ds"
            if mn.startswith(("ds_read", "ds_bpermute", "ds_permute", "ds_swizzle")): w = R(0); r = allr(1)
            else: r = allr(0)
        elif mn.startswith("buffer_") :
            self.kind = "vm"
            if mn in ("buffer_inv", "buffer_wbl2"): pass
            elif "lds" in self.mods.split() or (ops and ops[-1] == "lds"):
                r = allr(0) | {("s", "m0")}
            elif mn.startswith("buffer_load"): w = R(0); r = allr(1)
            elif mn.startswith("buffer_atomic"):
                r = allr(0)
                if "sc0" in self.mods.split(): w = R(0)
            else: r = allr(0)
        elif mn.startswith("global_"):
            self.kind = "vm"
            if mn.startswith("global_load_lds"): r = allr(0) | {("s", "m0")}
            elif mn.startswith("global_load"): w = R(0); r = allr(1)
            elif mn.startswith("global_atomic"):
                if "sc0" in self.mods.split(): w = R(0); r = allr(1)
                else: r = allr(0)
            else: r = allr(0)
        elif mn.startswith("s_load") or mn.startswith("s_memtime") or mn.startswith("s_memrealtime"):
            self.kind = "smem"; w = R(0); r = allr(1)
        elif mn in ("s_waitcnt", "s_barrier", "s_nop", "s_endpgm", "s_sleep", "s_setprio", "s_branch") or mn.startswith("s_cbranch"):
            self.kind = "ctl"
            if mn.startswith("s_cbranch_scc"): r = {("s", "scc")}
            if mn.startswith("s_cbranch_vcc"): r = {("s", "vcc")}
            if mn.startswith("s_cbranch_exec"): r = {("s", "exec")}
        elif mn.startswith("s_cmp") or mn.startswith("s_bitcmp"):
            self.kind = "salu"; w = {("s", "scc")}; r = allr(0)
        elif mn.startswith("s_"):
            self.kind = "salu"; w = R(0); r = allr(1)
            if "saveexec" in mn: w |= {("s", "exec")}; r |= {("s", "exec")}
            if mn.startswith(("s_cselect", "s_addc", "s_subb")): r |= {("s", "scc")}
        elif mn.endswith(":") or mn.startswith("."):
            self.kind = "label"
        else:
            raise ValueError("unknown instr " + self.text)
        if self.kind in ("valu", "mfma", "ds", "vm"): r = r | {("s", "exec")} if False else r
        self.w, self.r = w, r
    def is_trans(self): return self.mn.startswith(TRANS)
    def states(self):
        if self.kind == "label": return 0
        if self.weightless: return 0
        if self.mn == "s_nop": return int(self.ops[0], 0) + 1
        return 1

class Prog:
    def __init__(self):
        self.ins = []
        self.lgkm = []
        self.vm = []
        self.vm_count = 0
        self.auto = True
        self.smem_pending = set()
    def raw(self, text, weightless=False):
        i = Inst(text); i.weightless = weightless
        self.ins.append(i); return i
    def label(self, name):
        self.raw(name + ":")
    def comment(self, c):
        self.ins.append(_Comment(c))
    def e(self, text):
        i = Inst(text)
        touched = i.r | i.w
        if self.auto:
            self._need(touched, i)
        self.ins.append(i)
        if i.kind == "ds":
            self.lgkm.append(set(i.w))
        elif i.kind == "vm":
            self.vm.append((self.vm_count, set(i.w), set(x for x in i.r if x[0] == "v") if ("store" in i.mn or "atomic" in i.mn) else set()))
            self.vm_count += 1
            i.note = self.vm_count - 1
        elif i.kind == "smem":
            self.smem_pending |= i.w
        return i
    def _need(self, touched, inst):
        n = None
        for idx, d in enumerate(self.lgkm):
            if d & touched: n = idx
        if self.smem_pending & touched:
            self.wait(lgkm=0)
        elif n is not None:
            self.wait(lgkm=len(self.lgkm) - 1 - n)
        n = None
        for idx, (tok, d, sd) in enumerate(self.vm):
            if d & touched: n = idx
        if n is not None:
            self.wait(vm=len(self.vm) - 1 - n)
    def wait(self, vm=None, lgkm=None):
        parts = []
        if vm is not None:
            if vm < len(self.vm):
                vm = min(vm, 63)
                parts.append(f"vmcnt({vm})"); self.vm = self.vm[len(self.vm) - vm:] if vm else []
        if lgkm is not None:
            if lgkm < len(self.lgkm) or (lgkm == 0 and self.smem_pending):
                lgkm = min(lgkm, 15)
                if self.smem_pending and lgkm != 0: lgkm = 0
                parts.append(f"lgkmcnt({lgkm})"); self.lgkm = self.lgkm[len(self.lgkm) - lgkm:] if lgkm else []
                if lgkm == 0: self.smem_pending = set()
        if parts:
            self.ins.append(Inst("s_waitcnt " + " ".join(parts)))
    def wait_vm_tok(self, tok):
        younger = self.vm_count - 1 - tok
        self.wait(vm=younger)
    def last_vm(self): return self.vm_count - 1
    def force_wait(self, vm=None, lgkm=None):
        parts = []
        if vm is not None:
            parts.append(f"vmcnt({vm})"); self.vm = self.vm[len(self.vm) - vm:] if vm and vm < len(self.vm) else ([] if not vm else self.vm)
        if lgkm is not None:
            parts.append(f"lgkmcnt({lgkm})"); self.lgkm = self.lgkm[len(self.lgkm) - lgkm:] if lgkm and lgkm < len(self.lgkm) else ([] if not lgkm else self.lgkm)
            if lgkm == 0: self.smem_pending = set()
        self.ins.append(Inst("s_waitcnt " + " ".join(parts)))
    def barrier(self):
        self.raw("s_barrier")
    def hazards(self):
        out = []
        def dist_back(pred, limit):
            d = 0
            for j in range(len(out) - 1, -1, -1):
                p = out[j]
                if isinstance(p, _Comment): continue
                if p.kind == "label":
                    continue
                if pred(p): return d
                d += p.states()
                if d >= limit: return None
            return None
        for i in self.ins:
            if isinstance(i, _Comment) or i.kind == "label":
                out.append(i); continue
            need = 0
            def req(pred, n):
                nonlocal need
                d = dist_back(pred, n)
                if d is not None and d < n: need = max(need, n - d)
            vread = {x for x in i.r if x[0] in "va"}
            vwrite = {x for x in i.w if x[0] in "va"}
            sread = {x for x in i.r if x[0] == "s"}
            if i.kind == "mfma":
                req(lambda p: p.kind == "valu" and (p.w & vread), 2)
                C = regs_of(i.ops[3]); AB = regs_of(i.ops[1]) | regs_of(i.ops[2])
                for ps, nC, nAB in ((4, 6, 8), (8, 10, 12)):
                    req(lambda p: p.kind == "mfma" and p.passes == ps and (p.w & AB), nAB)
                    req(lambda p: p.kind == "mfma" and p.passes == ps and (p.w & C) and not (p.w == C and p.passes == i.passes), nC)
                    req(lambda p: p.kind == "mfma" and p.passes == ps and (p.w & i.w) and not (p.w == C and p.passes == i.passes), nC)
                req(lambda p: p.kind == "valu" and ("s", "exec") in p.w, 4)
            if i.kind in ("valu", "ds", "vm"):
                for ps, n in ((4, 8), (8, 12)):
                    req(lambda p: p.kind == "mfma" and p.passes == ps and (p.w & (vread | vwrite)), n)
            if i.kind == "valu":
                for ps, n in ((4, 3), (8, 7)):
                    req(lambda p: p.kind == "mfma" and p.passes == ps and (regs_of(p.ops[3]) & vwrite), n)
                if not i.is_trans():
                    req(lambda p: p.kind == "valu" and p.is_trans() and (p.w & vread), 1)
                else:
                    req(lambda p: p.kind == "valu" and p.is_trans() and (p.w & vread), 1)
                if i.mn.startswith("v_permlane"):
                    req(lambda p: p.kind == "valu" and (p.w & vread), 2)
                if i.mn.startswith(("v_readfirstlane", "v_readlane")):
                    req(lambda p: p.kind == "valu" and (p.w & vread), 1)
                if "dpp" in i.mn or "row_" in i.mods or "quad_perm" in i.mods:
                    req(lambda p: p.kind == "valu" and (p.w & vread), 2)
                    req(lambda p: p.kind == "valu" and ("s", "exec") in p.w, 5)
                req(lambda p: p.kind == "valu" and (p.w & sread), 2)
                if i.mn.startswith(("v_readlane", "v_writelane")):
                    req(lambda p: p.kind == "valu" and (p.w & sread), 4)
                req(lambda p: p.kind == "vm" and ("x4" in p.mn or "x3" in p.mn) and ("store" in p.mn) and ({x for x in p.r if x[0] == "v"} & vwrite), 2)
            if i.kind == "vm":
                req(lambda p: p.kind == "valu" and (p.w & sread), 5)
                if ("s", "m0") in i.r:
                    req(lambda p: p.kind == "salu" and ("s", "m0") in p.w, 1)
            if i.kind in ("ds", "vm") and vwrite:
                req(lambda p: p.kind == "vm" and ("x4" in p.mn or "x3" in p.mn) and ("store" in p.mn) and ({x for x in p.r if x[0] == "v"} & vwrite), 1)
            if i.kind == "salu" or i.kind == "ctl":
                req(lambda p: p.kind == "valu" and (p.w & sread), 2)
            while need > 0:
                k = min(need, 16)
                out.append(Inst(f"s_nop {k-1}")); need -= k
            out.append(i)
        self.ins = out
    def text(self):
        lines = []
        for i in self.ins:
            if isinstance(i, _Comment): lines.append("    ; " + i.c)
            elif i.kind == "label": lines.append(i.text)
            else: lines.append("    " + i.text)
        return "\n".join(lines) + "\n"

class _Comment:
    kind = "comment"
    def __init__(self, c): self.c = c

def interleave(main, side, ratio=None):
    out = []
    n, m = len(main), len(side)
    j = 0
    for i, x in enumerate(main):
        out.append(x)
        tgt = (i + 1) * m // n if n else m
        while j < tgt:
            out.append(side[j]); j += 1
    out += side[j:]
    return out

KD = """.section .rodata,"a"
.p2align 6
.amdhsa_kernel {name}
  .amdhsa_next_free_vgpr {vgpr}
  .amdhsa_next_free_sgpr {sgpr}
  .amdhsa_accum_offset {acc}
  .amdhsa_group_segment_fixed_size 0
  .amdhsa_kernarg_size 80
  .amdhsa_user_sgpr_count 2
  .amdhsa_user_sgpr_kernarg_segment_ptr 1
  .amdhsa_system_sgpr_workgroup_id_x 1
  .amdhsa_float_denorm_mode_32 3
  .amdhsa_float_denorm_mode_16_64 3
.end_amdhsa_kernel
"""
def kernel_text(name, prog_text, vgpr, sgpr=96, acc=None):
    acc = acc or ((vgpr + 3) // 4 * 4)
    return (f".text\n.globl {name}\n.p2align 8\n.type {name},@function\n{name}:\n" + prog_text + KD.format(name=name, vgpr=vgpr, sgpr=sgpr, acc=acc))
```

```python
from asmgen import *

ACT_G_BYTES = 144 * 1024
ACT_OFF = 0
LOG2E = 0x3fb8aa3b

DIAG_OFF = 0xC00000
def stamp(p, i, diag):
    if diag == "clk":
        p.raw(f"s_memtime s[{64+2*i}:{65+2*i}]")
    elif diag:
        p.raw(f"s_memrealtime s[{64+2*i}:{65+2*i}]")
def write_stamps(p, n, diag, s_ws, vt, tidreg):
    if not diag: return
    e = p.e
    p.force_wait(lgkm=0)
    e(f"v_cmp_eq_u32 vcc, 0, v{tidreg}")
    e("s_and_saveexec_b64 s[90:91], vcc")
    e("s_cbranch_execz L_nostamp_%d" % id(p))
    e(f"s_lshl_b32 s92, s2, 7")
    e(f"s_add_u32 s92, s92, {DIAG_OFF}")
    e(f"v_mov_b32 v{vt}, s92")
    for i in range(n):
        e(f"v_mov_b32 v{vt+2}, s{64+2*i}")
        e(f"v_mov_b32 v{vt+3}, s{65+2*i}")
        e(f"global_store_dwordx2 v{vt}, v[{vt+2}:{vt+3}], s[{s_ws}:{s_ws+1}] offset:{8*i}")
        p.raw("s_nop 1")
    p.label("L_nostamp_%d" % id(p))
    e("s_mov_b64 exec, s[90:91]")

def gen_k2(name, standalone=True, diag=False):
    p = Prog()
    e = p.e
    VB = 0
    ACCA = 144
    ACCB = 176
    AF = 208
    VX = 232
    VAD = 236
    VDMA = 238
    VLANE16 = 239
    VT = 240
    VTID = 248
    S_X, S_WO, S_WD, S_OUT, S_WS = 4, 6, 8, 10, 12
    SRD_ACT, SRD_WA, SRD_WB, SRD_X, SRD_OUT = 16, 20, 24, 28, 32
    S_W, S_R, S_TH, S_TB, S_CB = 36, 37, 38, 39, 40
    S_OA, S_OB, S_T, S_T2, S_M0B, S_BOFF = 41, 42, 43, 44, 45, 46
    S_L2E = 47

    e("s_cmp_ge_u32 s2, 256")
    e("s_cbranch_scc1 L_k2_end")
    stamp(p, 0, diag)
    e(f"s_load_dwordx2 {sr(S_X,2)}, s[0:1], 0")
    e(f"s_load_dwordx2 {sr(S_WO,2)}, s[0:1], 16")
    e(f"s_load_dwordx2 {sr(S_WD,2)}, s[0:1], 48")
    e(f"s_load_dwordx2 {sr(S_OUT,2)}, s[0:1], 56")
    e(f"s_load_dwordx2 {sr(S_WS,2)}, s[0:1], 72")
    e(f"v_mov_b32 v{VTID}, v0")
    e(f"v_lshrrev_b32 v{VT}, 6, v0")
    e(f"v_and_b32 v{VT+1}, 63, v0")
    e(f"v_readfirstlane_b32 s{S_W}, v{VT}")
    e(f"s_and_b32 s{S_T}, s2, 7")
    e(f"s_lshr_b32 s{S_T2}, s2, 3")
    e(f"s_and_b32 s{S_CB}, s{S_T2}, 7")
    e(f"s_lshr_b32 s{S_T2}, s{S_T2}, 3")
    e(f"s_lshl_b32 s{S_TB}, s{S_T}, 2")
    e(f"s_add_u32 s{S_TB}, s{S_TB}, s{S_T2}")
    e(f"s_lshr_b32 s{S_R}, s{S_W}, 1")
    e(f"s_and_b32 s{S_TH}, s{S_W}, 1")
    L = VT + 1
    e(f"v_lshlrev_b32 v{VLANE16}, 4, v{L}")
    e(f"v_lshrrev_b32 v{VT+2}, 3, v{L}")
    e(f"v_lshlrev_b32 v{VDMA}, 10, v{VT+2}")
    e(f"v_and_b32 v{VT+2}, 7, v{L}")
    e(f"v_bfe_u32 v{VT+3}, v{L}, 4, 1")
    e(f"v_lshlrev_b32 v{VT+3}, 2, v{VT+3}")
    e(f"v_xor_b32 v{VT+2}, v{VT+2}, v{VT+3}")
    e(f"v_lshl_add_u32 v{VDMA}, v{VT+2}, 4, v{VDMA}")
    e(f"s_lshl_b32 s{S_T}, s{S_CB}, 7")
    e(f"v_add_u32 v{VDMA}, s{S_T}, v{VDMA}")
    e(f"v_lshrrev_b32 v{VT+2}, 5, v{L}")
    e(f"v_lshlrev_b32 v{VT+2}, 2, v{VT+2}")
    e(f"v_bfe_u32 v{VT+3}, v{L}, 2, 2")
    e(f"v_add_u32 v{VT+2}, v{VT+2}, v{VT+3}")
    e(f"v_lshlrev_b32 v{VAD}, 7, v{VT+2}")
    e(f"v_bfe_u32 v{VT+2}, v{L}, 4, 1")
    e(f"v_lshlrev_b32 v{VT+2}, 1, v{VT+2}")
    e(f"v_bfe_u32 v{VT+4}, v{L}, 1, 1")
    e(f"v_add_u32 v{VT+2}, v{VT+2}, v{VT+4}")
    e(f"v_bfe_u32 v{VT+4}, v{L}, 3, 1")
    e(f"v_lshlrev_b32 v{VT+4}, 2, v{VT+4}")
    e(f"v_xor_b32 v{VT+2}, v{VT+2}, v{VT+4}")
    e(f"v_lshl_add_u32 v{VAD}, v{VT+2}, 4, v{VAD}")
    e(f"v_and_b32 v{VT+2}, 1, v{L}")
    e(f"v_lshl_add_u32 v{VAD}, v{VT+2}, 3, v{VAD}")
    e(f"s_lshl_b32 s{S_T}, s{S_R}, 12")
    e(f"v_add_u32 v{VAD}, s{S_T}, v{VAD}")
    e(f"v_xor_b32 v{VAD+1}, 64, v{VAD}")
    p.wait(lgkm=0)
    e(f"s_lshl_b32 s{S_T}, s{S_TB}, 1")
    e(f"s_add_u32 s{S_T}, s{S_T}, s{S_TH}")
    e(f"s_mul_i32 s{S_T}, s{S_T}, {ACT_G_BYTES}")
    e(f"s_mul_i32 s{S_T2}, s{S_R}, {36*1024}")
    e(f"s_add_u32 s{S_T}, s{S_T}, s{S_T2}")
    if ACT_OFF: e(f"s_add_u32 s{S_T}, s{S_T}, {ACT_OFF}")
    e(f"s_add_u32 s{SRD_ACT}, s{S_WS}, s{S_T}")
    e(f"s_addc_u32 s{SRD_ACT+1}, s{S_WS+1}, 0")
    e(f"s_mov_b32 s{SRD_ACT+2}, {36*1024}")
    e(f"s_mov_b32 s{SRD_ACT+3}, 0x20000")
    e(f"s_mov_b32 s{SRD_WA}, s{S_WD}")
    e(f"s_mov_b32 s{SRD_WA+1}, s{S_WD+1}")
    e(f"s_mov_b32 s{SRD_WA+2}, {1792*1024}")
    e(f"s_mov_b32 s{SRD_WA+3}, 0x20000")
    e(f"s_cmp_eq_u32 s{S_R}, 3")
    e(f"s_cselect_b32 s{SRD_WB}, s{S_WO}, s{S_WD}")
    e(f"s_cselect_b32 s{SRD_WB+1}, s{S_WO+1}, s{S_WD+1}")
    e(f"s_cselect_b32 s{SRD_WB+2}, {512*1024}, {1792*1024}") if False else None
    e(f"s_mov_b32 s{S_T}, {512*1024}")
    e(f"s_mov_b32 s{S_T2}, {1792*1024}")
    e(f"s_cselect_b32 s{SRD_WB+2}, s{S_T}, s{S_T2}")
    e(f"s_mov_b32 s{SRD_WB+3}, 0x20000")
    e(f"s_mul_i32 s{S_OA}, s{S_R}, 36")
    e(f"s_add_u32 s{S_OA}, s{S_OA}, s{S_TH}")
    e(f"s_lshl_b32 s{S_OA}, s{S_OA}, 14")
    e(f"s_lshl_b32 s{S_T}, s{S_TH}, 14")
    e(f"s_sub_u32 s{S_T}, s{S_T}, 65536")
    e(f"s_cmp_eq_u32 s{S_R}, 3")
    e(f"s_cselect_b32 s{S_OB}, s{S_T}, s{S_OA}")
    e(f"s_lshl_b32 s{S_M0B}, s{S_R}, 12")
    e(f"s_lshl_b32 s{S_T}, s{S_TH}, 11")
    e(f"s_add_u32 s{S_M0B}, s{S_M0B}, s{S_T}")
    e(f"s_mov_b32 s{SRD_X}, s{S_X}")
    e(f"s_mov_b32 s{SRD_X+1}, s{S_X+1}")
    e(f"s_mov_b32 s{SRD_X+2}, {2048*1024}")
    e(f"s_mov_b32 s{SRD_X+3}, 0x20000")
    e(f"s_mov_b32 s{SRD_OUT}, s{S_OUT}")
    e(f"s_mov_b32 s{SRD_OUT+1}, s{S_OUT+1}")
    e(f"s_mov_b32 s{SRD_OUT+2}, {2048*1024}")
    e(f"s_mov_b32 s{SRD_OUT+3}, 0x20000")
    e(f"s_mov_b32 s{S_L2E}, {LOG2E:#x}")
    VXO = VTID + 1
    e(f"v_lshrrev_b32 v{VT+2}, 3, v{VTID}")
    e(f"v_lshlrev_b32 v{VXO}, 10, v{VT+2}")
    e(f"v_and_b32 v{VT+2}, 7, v{VTID}")
    e(f"v_lshl_add_u32 v{VXO}, v{VT+2}, 4, v{VXO}")
    e(f"s_lshl_b32 s{S_T}, s{S_TB}, 16")
    e(f"s_lshl_b32 s{S_T2}, s{S_CB}, 7")
    e(f"s_add_u32 s{S_T}, s{S_T}, s{S_T2}")
    e(f"v_add_u32 v{VXO}, s{S_T}, v{VXO}")
    e(f"buffer_load_dwordx4 {vr(VX,4)}, v{VXO}, {sr(SRD_X,4)}, 0 offen")

    NST, NSLOT, PF = 18, 10, 4
    dma_tok = {}
    def issue_stage(st):
        for kk in range(2):
            i = 2 * st + kk
            if i % 4 == 0:
                e(f"s_mov_b32 s{S_BOFF}, {(i // 4) * 4096}")
            e(f"buffer_load_dwordx4 {vr(VB + 4*i, 4)}, v{VLANE16}, {sr(SRD_ACT,4)}, s{S_BOFF} offen offset:{(i % 4) * 1024}")
        srd, so = (SRD_WA, S_OA) if st < 2 else (SRD_WB, S_OB)
        for j in range(2):
            e(f"s_add_u32 s{S_T}, s{so}, {st * 32768 + j * 8192}")
            e(f"s_add_u32 m0, s{S_M0B}, {(st % NSLOT) * 16384 + j * 1024}")
            e(f"buffer_load_dwordx4 v{VDMA}, {sr(srd,4)}, s{S_T} offen lds")
        dma_tok[st] = p.last_vm()
    for st in range(PF): issue_stage(st)
    for i in range(64): e(f"v_mov_b32 v{ACCA + i}, 0")

    cur_win = 0
    def set_window(slot):
        nonlocal cur_win
        win = (slot * 16384) // 65536
        if win != cur_win:
            d = (win - cur_win) * 65536
            for nt in range(2):
                e(f"v_add_u32 v{VAD+nt}, {d & 0xffffffff:#x}, v{VAD+nt}")
            cur_win = win
        return slot * 16384 - win * 65536
    def read_afrag(kidx):
        st, kk = kidx // 2, kidx % 2
        off = set_window(st % NSLOT) + kk * 2048
        buf = AF + (kidx % 3) * 8
        for nt in range(2):
            e(f"ds_read_b64_tr_b16 {vr(buf + 4*nt, 2)}, v{VAD+nt} offset:{off}")
            e(f"ds_read_b64_tr_b16 {vr(buf + 4*nt + 2, 2)}, v{VAD+nt} offset:{off + 1024}")
    stamp(p, 1, diag)
    p.wait_vm_tok(dma_tok[0]); p.barrier()
    stamp(p, 2, diag)
    read_afrag(0); read_afrag(1)
    for st in range(NST):
        if st + 1 < NST:
            p.wait_vm_tok(dma_tok[st + 1]); p.barrier()
            if st + PF < NST: issue_stage(st + PF)
        for kk in range(2):
            kidx = 2 * st + kk
            if kidx + 2 < 2 * NST: read_afrag(kidx + 2)
            acc = ACCA if kidx < 4 else ACCB
            buf = AF + (kidx % 3) * 8
            for nt in range(2):
                e(f"v_mfma_f32_32x32x16_bf16 {vr(acc + 16*nt, 16)}, {vr(buf + 4*nt, 4)}, {vr(VB + 4*kidx, 4)}, {vr(acc + 16*nt, 16)}")
    stamp(p, 3, diag)
    p.wait(lgkm=0); p.barrier()
    VW = VT
    e(f"v_and_b32 v{VT+1}, 63, v{VTID}")
    e(f"v_and_b32 v{VT+2}, 31, v{VT+1}")
    e(f"v_lshrrev_b32 v{VT+3}, 5, v{VT+1}")
    e(f"v_and_b32 v{VT+4}, 15, v{VT+2}")
    e(f"v_xor_b32 v{VT+4}, v{VT+4}, v{VT+3}")
    e(f"v_lshlrev_b32 v{VW}, 8, v{VT+2}")
    e(f"v_lshl_add_u32 v{VW}, v{VT+4}, 4, v{VW}")
    e(f"s_mul_i32 s{S_T}, s{S_TH}, 40960")
    e(f"s_lshl_b32 s{S_T2}, s{S_R}, 13")
    e(f"s_add_u32 s{S_T}, s{S_T}, s{S_T2}")
    e(f"v_add_u32 v{VW}, s{S_T}, v{VW}")
    e(f"s_cmp_eq_u32 s{S_R}, 3")
    e("s_cbranch_scc1 L_k2_r3")
    for i in range(32): e(f"v_add_f32 v{ACCA+i}, v{ACCA+i}, v{ACCB+i}")
    e("s_branch L_k2_wr")
    p.label("L_k2_r3")
    for nt in range(2):
        for j in range(4):
            e(f"v_xor_b32 v{VT+5}, {(8*nt + 2*j) * 16}, v{VW}")
            e(f"ds_write_b128 v{VT+5}, {vr(ACCB + 16*nt + 4*j, 4)} offset:8192")
    p.label("L_k2_wr")
    p.raw("s_nop 7"); p.raw("s_nop 3")
    for nt in range(2):
        for j in range(4):
            e(f"v_xor_b32 v{VT+5}, {(8*nt + 2*j) * 16}, v{VW}")
            e(f"ds_write_b128 v{VT+5}, {vr(ACCA + 16*nt + 4*j, 4)}")
    p.force_wait(lgkm=0); p.barrier()
    VR = VT
    e(f"v_lshrrev_b32 v{VT+1}, 3, v{VTID}")
    e(f"v_and_b32 v{VT+2}, 31, v{VT+1}")
    e(f"v_lshrrev_b32 v{VT+3}, 5, v{VT+1}")
    e(f"v_mul_u32_u24 v{VT+3}, 40960, v{VT+3}")
    e(f"v_lshl_add_u32 v{VR}, v{VT+2}, 8, v{VT+3}")
    e(f"v_and_b32 v{VT+2}, 15, v{VT+2}")
    e(f"v_and_b32 v{VT+4}, 7, v{VTID}")
    e(f"v_lshlrev_b32 v{VT+4}, 1, v{VT+4}")
    e(f"v_xor_b32 v{VT+4}, v{VT+4}, v{VT+2}")
    e(f"v_lshl_add_u32 v{VR}, v{VT+4}, 4, v{VR}")
    e(f"v_xor_b32 v{VR+1}, 16, v{VR}")
    for src in range(5):
        e(f"ds_read_b128 {vr(8*src, 4)}, v{VR} offset:{src * 8192}")
        e(f"ds_read_b128 {vr(8*src + 4, 4)}, v{VR+1} offset:{src * 8192}")
    for i in range(8):
        e(f"v_add_f32 v{i}, v{i}, v{8+i}")
        e(f"v_add_f32 v{16+i}, v{16+i}, v{24+i}")
    for i in range(8):
        e(f"v_add_f32 v{i}, v{i}, v{16+i}")
    for i in range(8):
        e(f"v_mul_f32 v{40+i}, s{S_L2E}, v{i}")
    for i in range(8):
        e(f"v_exp_f32 v{40+i}, -v{40+i}")
    for i in range(8):
        e(f"v_add_f32 v{40+i}, 1.0, v{40+i}")
    for i in range(8):
        e(f"v_rcp_f32 v{40+i}, v{40+i}")
    for i in range(8):
        e(f"v_mul_f32 v{i}, v{i}, v{32+i}")
    for i in range(4):
        e(f"v_lshlrev_b32 v{48+2*i}, 16, v{VX+i}")
        e(f"v_and_b32 v{49+2*i}, 0xffff0000, v{VX+i}")
    for i in range(8):
        e(f"v_fma_f32 v{i}, v{i}, v{40+i}, v{48+i}")
    for i in range(4):
        e(f"v_cvt_pk_bf16_f32 v{56+i}, v{2*i}, v{2*i+1}")
    stamp(p, 4, diag)
    e(f"buffer_store_dwordx4 {vr(56,4)}, v{VXO}, {sr(SRD_OUT,4)}, 0 offen")
    if diag:
        p.force_wait(vm=0)
        stamp(p, 5, diag)
        write_stamps(p, 6, diag, S_WS, 60, VTID)
    p.label("L_k2_end")
    p.raw("s_endpgm")
    p.hazards()
    return kernel_text(name, p.text(), 256)

if __name__ == "__main__":
    NAME = "recurrent_scan__linear_attn_block__glu_gated_geglu__prompt"
    hdr = "; @launch grid=(256,1,1) block=(512,1,1) lds=163840\n.amdgcn_target \"amdgcn-amd-amdhsa--gfx950\"\n"
    open("k2_only.s", "w").write(hdr + gen_k2(NAME + "_kernel"))
    open("k2_diag.s", "w").write(hdr + gen_k2(NAME + "_kernel", diag=True))
    print("written")
```

```python
from asmgen import *
from k2 import stamp, write_stamps, ACT_G_BYTES, ACT_OFF, LOG2E
import struct
def f2u(x): return struct.unpack("<I", struct.pack("<f", x))[0]

T_OFF = 0xA00000
GC0 = -2.0 * 0.7978845608028654 * 1.4426950408889634
GC1 = GC0 * 0.044715

def gen_k1(name, diag=False, dbg=()):
    p = Prog()
    e = p.e
    XB, ACC = 0, [128, 160]
    AF = 192
    VA0, VA1, VDM0, VDM1, VL16, VTID = 216, 217, 218, 219, 220, 221
    VT = 222
    S_X, S_WQKV, S_WG, S_WU, S_DBG, S_WS = 4, 6, 8, 10, 12, 14
    SRD_X, SRD_M0, SRD_M1, SRD_ACT, SRD_T, SRD_DBG = 16, 20, 24, 28, 32, 36
    S_W, S_TG, S_CH, S_RB, S_CB, S_AB = 40, 41, 42, 43, 44, 45
    S_T, S_T2, S_SO, S_M0B, S_STRIDE8 = 46, 47, 48, 49, 50
    S_C0, S_C1, S_L2E, S_EPS6, S_KMASK = 51, 52, 53, 54, 56
    S_KIDX = 58
    S_COL0, S_COL1 = 59, 60
    MISC = 8 * 16384

    e("s_cmp_ge_u32 s2, 256")
    e("s_cbranch_scc1 L_k1_end")
    stamp(p, 0, diag)
    e(f"s_load_dwordx2 {sr(S_X,2)}, s[0:1], 0")
    e(f"s_load_dwordx2 {sr(S_WQKV,2)}, s[0:1], 8")
    e(f"s_load_dwordx2 {sr(S_WG,2)}, s[0:1], 32")
    e(f"s_load_dwordx2 {sr(S_WU,2)}, s[0:1], 40")
    e(f"s_load_dwordx2 {sr(S_DBG,2)}, s[0:1], 64")
    e(f"s_load_dwordx2 {sr(S_WS,2)}, s[0:1], 72")
    e(f"v_mov_b32 v{VTID}, v0")
    e(f"v_lshrrev_b32 v{VT}, 6, v0")
    L = VT + 1
    e(f"v_and_b32 v{L}, 63, v0")
    e(f"v_readfirstlane_b32 s{S_W}, v{VT}")
    e(f"s_and_b32 s{S_T}, s2, 7")
    e(f"s_lshr_b32 s{S_T2}, s2, 3")
    e(f"s_and_b32 s{S_RB}, s{S_T}, 1")
    e(f"s_lshl_b32 s{S_RB}, s{S_RB}, 3")
    e(f"s_and_b32 s{S_CB}, s{S_T2}, 7")
    e(f"s_add_u32 s{S_RB}, s{S_RB}, s{S_CB}")
    e(f"s_lshr_b32 s{S_CB}, s{S_T}, 1")
    e(f"s_lshl_b32 s{S_CB}, s{S_CB}, 2")
    e(f"s_lshr_b32 s{S_T2}, s{S_T2}, 3")
    e(f"s_add_u32 s{S_CB}, s{S_CB}, s{S_T2}")
    e(f"s_lshr_b32 s{S_AB}, s{S_CB}, 1")
    e(f"s_and_b32 s{S_TG}, s{S_W}, 3")
    e(f"s_lshr_b32 s{S_CH}, s{S_W}, 2")
    e(f"v_lshlrev_b32 v{VL16}, 4, v{L}")
    e(f"s_mov_b32 s{S_C0}, {f2u(GC0):#x}")
    e(f"s_mov_b32 s{S_C1}, {f2u(GC1):#x}")
    e(f"s_mov_b32 s{S_L2E}, {LOG2E:#x}")
    e(f"s_mov_b32 s{S_EPS6}, {f2u(1e-6):#x}")
    e(f"s_mov_b32 s{S_KMASK}, 0x0000ffff")
    e(f"s_mov_b32 s{S_KMASK+1}, 0x0000ffff")
    e(f"v_lshrrev_b32 v{VT+2}, 4, v{L}")
    e(f"v_and_b32 v{VT+3}, 15, v{L}")
    e(f"v_xor_b32 v{VT+3}, v{VT+3}, v{VT+2}")
    e(f"v_lshlrev_b32 v{VT+8}, 10, v{VT+2}")
    e(f"v_lshl_add_u32 v{VT+8}, v{VT+3}, 4, v{VT+8}")
    for j in range(1, 4): e(f"v_xor_b32 v{VT+8+j}, {64*j}, v{VT+8}")
    p.wait(lgkm=0)
    e(f"s_lshl_b32 s{S_T}, s{S_RB}, 17")
    e(f"s_add_u32 s{SRD_X}, s{S_X}, s{S_T}")
    e(f"s_addc_u32 s{SRD_X+1}, s{S_X+1}, 0")
    e(f"s_mov_b32 s{SRD_X+2}, {128*1024}")
    e(f"s_mov_b32 s{SRD_X+3}, 0x20000")
    e(f"s_lshl_b32 s{S_SO}, s{S_W}, 14")
    e(f"s_lshl_b32 s{S_M0B}, s{S_W}, 12")
    for c in range(4):
        for j in range(4):
            e(f"s_add_u32 s{S_T}, s{S_SO}, {j*4096 + c*256}")
            e(f"s_add_u32 m0, s{S_M0B}, {c*32768 + j*1024}")
            e(f"buffer_load_dwordx4 v{VT+8+j}, {sr(SRD_X,4)}, s{S_T} offen lds")
    x_tok = p.last_vm()
    e(f"s_lshl_b32 s{S_T}, s{S_RB}, 2")
    e(f"s_add_u32 s{S_T}, s{S_T}, s{S_TG}")
    e(f"s_mul_i32 s{S_T}, s{S_T}, {ACT_G_BYTES}")
    e(f"s_add_u32 s{SRD_ACT}, s{S_WS}, s{S_T}")
    e(f"s_addc_u32 s{SRD_ACT+1}, s{S_WS+1}, 0")
    e(f"s_mov_b32 s{SRD_ACT+2}, {ACT_G_BYTES}")
    e(f"s_mov_b32 s{SRD_ACT+3}, 0x20000")
    e(f"s_lshl_b32 s{S_T}, s{S_AB}, 13")
    e(f"s_add_u32 s{S_T}, s{S_T}, {T_OFF}")
    e(f"s_add_u32 s{SRD_T}, s{S_WS}, s{S_T}")
    e(f"s_addc_u32 s{SRD_T+1}, s{S_WS+1}, 0")
    e(f"s_mov_b32 s{SRD_T+2}, 8192")
    e(f"s_mov_b32 s{SRD_T+3}, 0x20000")
    e(f"s_mov_b32 s{SRD_DBG}, s{S_DBG}")
    e(f"s_mov_b32 s{SRD_DBG+1}, s{S_DBG+1}")
    e(f"s_mov_b32 s{SRD_DBG+2}, 256")
    e(f"s_mov_b32 s{SRD_DBG+3}, 0x20000")
    e(f"s_and_b32 s{S_T}, s{S_CB}, 1")
    e(f"s_cmp_eq_u32 s{S_T}, 1")
    e("s_cbranch_scc1 L_k1_typeA")

    def set_srd(srd, sptr, nbytes):
        e(f"s_mov_b32 s{srd}, s{sptr}")
        e(f"s_mov_b32 s{srd+1}, s{sptr+1}")
        e(f"s_mov_b32 s{srd+2}, {nbytes}")
        e(f"s_mov_b32 s{srd+3}, 0x20000")
    def lane(): return VT + 1
    def calc_lane():
        e(f"v_and_b32 v{VT+1}, 63, v{VTID}")
    def setup_pass(kind, stride):
        out = []
        a = out.append
        Lr = VT + 30
        t2, t3, t4 = VT + 31, VT + 32, VT + 33
        a(f"v_and_b32 v{Lr}, 63, v{VTID}")
        if kind in ("full", "q"):
            a(f"v_lshrrev_b32 v{t2}, 3, v{Lr}")
            a(f"v_mul_u32_u24 v{VDM0}, {stride}, v{t2}")
            a(f"v_and_b32 v{t2}, 7, v{Lr}")
            a(f"v_bfe_u32 v{t3}, v{Lr}, 4, 1")
            a(f"v_lshlrev_b32 v{t3}, {1 if kind == 'full' else 2}, v{t3}")
            a(f"v_xor_b32 v{t2}, v{t2}, v{t3}")
            a(f"v_lshl_add_u32 v{VDM0}, v{t2}, 4, v{VDM0}")
            if kind == "full": a(f"v_xor_b32 v{VDM1}, 64, v{VDM0}")
            else: a(f"v_mov_b32 v{VDM1}, v{VDM0}")
        else:
            a(f"v_lshrrev_b32 v{t2}, 2, v{Lr}")
            a(f"v_mul_u32_u24 v{VDM0}, {stride}, v{t2}")
            a(f"v_and_b32 v{t2}, 3, v{Lr}")
            a(f"v_lshl_add_u32 v{VDM0}, v{t2}, 4, v{VDM0}")
            a(f"v_xor_b32 v{VDM1}, 32, v{VDM0}")
        return out
    def setup_afrag(kind, win_bytes):
        out = []
        a = out.append
        Lr = VT + 30
        t2, t3, t4 = VT + 31, VT + 32, VT + 33
        a(f"v_and_b32 v{Lr}, 63, v{VTID}")
        a(f"v_lshrrev_b32 v{t2}, 5, v{Lr}")
        a(f"v_lshlrev_b32 v{t2}, 3, v{t2}")
        a(f"v_bfe_u32 v{t3}, v{Lr}, 2, 2")
        a(f"v_add_u32 v{t2}, v{t2}, v{t3}")
        a(f"v_lshlrev_b32 v{VA0}, {6 if kind == 'half' else 7}, v{t2}")
        a(f"v_bfe_u32 v{t2}, v{Lr}, 1, 1")
        a(f"v_bfe_u32 v{t3}, v{Lr}, 4, 1")
        if kind == "full":
            a(f"s_lshl_b32 s{S_T}, s{S_CH}, 2")
            a(f"v_add_u32 v{t2}, s{S_T}, v{t2}")
            a(f"v_lshl_add_u32 v{VA0}, v{t3}, 13, v{VA0}")
            a(f"v_lshlrev_b32 v{t3}, 2, v{t3}")
            a(f"v_xor_b32 v{t2}, v{t2}, v{t3}")
            a(f"v_bfe_u32 v{t3}, v{Lr}, 3, 1")
            a(f"v_lshlrev_b32 v{t3}, 1, v{t3}")
            a(f"v_xor_b32 v{t2}, v{t2}, v{t3}")
        elif kind == "q":
            a(f"s_lshl_b32 s{S_T}, s{S_CH}, 2")
            a(f"v_add_u32 v{t2}, s{S_T}, v{t2}")
            a(f"v_lshl_add_u32 v{t2}, v{t3}, 1, v{t2}")
            a(f"v_bfe_u32 v{t3}, v{Lr}, 3, 1")
            a(f"v_lshlrev_b32 v{t3}, 2, v{t3}")
            a(f"v_xor_b32 v{t2}, v{t2}, v{t3}")
        else:
            a(f"s_lshl_b32 s{S_T}, s{S_CH}, 1")
            a(f"v_add_u32 v{t2}, s{S_T}, v{t2}")
            a(f"v_lshl_add_u32 v{VA0}, v{t3}, 13, v{VA0}")
            a(f"v_lshlrev_b32 v{t3}, 1, v{t3}")
            a(f"v_xor_b32 v{t2}, v{t2}, v{t3}")
        a(f"v_lshl_add_u32 v{VA0}, v{t2}, 4, v{VA0}")
        a(f"v_and_b32 v{t2}, 1, v{Lr}")
        a(f"v_lshl_add_u32 v{VA0}, v{t2}, 3, v{VA0}")
        if win_bytes: a(f"v_add_u32 v{VA0}, {win_bytes:#x}, v{VA0}")
        if kind == "full": a(f"v_xor_b32 v{VA1}, 32, v{VA0}")
        return out

    def ln_phase():
        p.wait_vm_tok(x_tok); p.barrier()
        stamp(p, 1, diag)
        XA, XA2 = VT + 2, VT + 3
        calc_lane()
        Lr = VT + 1
        e(f"v_and_b32 v{VT+4}, 31, v{Lr}")
        e(f"v_lshrrev_b32 v{VT+5}, 5, v{Lr}")
        e(f"v_and_b32 v{VT+6}, 15, v{VT+4}")
        e(f"v_xor_b32 v{VT+6}, v{VT+6}, v{VT+5}")
        e(f"s_lshl_b32 s{S_T}, s{S_TG}, 5")
        e(f"v_add_u32 v{VT+4}, s{S_T}, v{VT+4}")
        e(f"v_lshlrev_b32 v{XA}, 8, v{VT+4}")
        e(f"v_lshl_add_u32 v{XA}, v{VT+6}, 4, v{XA}")
        for k in range(32):
            c, kk = k >> 3, k & 7
            t = VT + 8 + (k & 3)
            e(f"v_xor_b32 v{t}, {32*kk}, v{XA}")
            if c >= 2: e(f"v_add_u32 v{t}, 0x10000, v{t}")
            e(f"ds_read_b128 {vr(XB + 4*k, 4)}, v{t} offset:{(c & 1) * 32768}")
        p.wait(lgkm=0); p.barrier()
    def ln_math():
        ONES = VT + 2
        SU = [VT + 4, VT + 5, VT + 6, VT + 7]; SQ = [VT + 8, VT + 9, VT + 10, VT + 11]
        e(f"v_mov_b32 v{ONES}, 0x3f803f80")
        for r in SU + SQ: e(f"v_mov_b32 v{r}, 0")
        for i in range(128):
            e(f"v_dot2c_f32_bf16 v{SU[i&3]}, v{XB+i}, v{ONES}")
            e(f"v_dot2c_f32_bf16 v{SQ[i&3]}, v{XB+i}, v{XB+i}")
        p.raw("s_nop 3")
        for A in (SU, SQ):
            e(f"v_add_f32 v{A[0]}, v{A[0]}, v{A[1]}")
            e(f"v_add_f32 v{A[2]}, v{A[2]}, v{A[3]}")
            e(f"v_add_f32 v{A[0]}, v{A[0]}, v{A[2]}")
            e(f"v_mov_b32 v{A[1]}, v{A[0]}")
            e(f"v_permlane32_swap_b32 v{A[0]}, v{A[1]}")
            e(f"v_add_f32 v{A[0]}, v{A[0]}, v{A[1]}")
        M, RS, NB = SU[0], VT + 12, VT + 14
        e(f"v_mul_f32 v{M}, {f2u(1/512):#x}, v{SU[0]}")
        e(f"v_mul_f32 v{SQ[0]}, {f2u(1/512):#x}, v{SQ[0]}")
        e(f"v_fma_f32 v{SQ[0]}, -v{M}, v{M}, v{SQ[0]}")
        e(f"v_add_f32 v{SQ[0]}, {f2u(1e-5):#x}, v{SQ[0]}")
        e(f"v_rsq_f32 v{RS}, v{SQ[0]}")
        e(f"v_mul_f32 v{NB}, v{M}, v{RS}")
        e(f"v_sub_f32 v{NB}, 0, v{NB}")
        for i in range(128):
            t = VT + 16 + 2 * (i & 3)
            e(f"v_lshlrev_b32 v{t}, 16, v{XB+i}")
            e(f"v_and_b32 v{t+1}, 0xffff0000, v{XB+i}")
            e(f"v_pk_fma_f32 {vr(t,2)}, {vr(t,2)}, {vr(RS,2)}, {vr(NB,2)} op_sel_hi:[1,0,0]")
            e(f"v_cvt_pk_bf16_f32 v{XB+i}, v{t}, v{t+1}")

    def ffn_epi(a, kimm, tbase):
        out = []
        t = tbase
        for i in range(8): out.append(f"v_mul_f32 v{t+i}, v{a+i}, v{a+i}")
        for i in range(8): out.append(f"v_mul_f32 v{t+i}, s{S_C1}, v{t+i}")
        for i in range(8): out.append(f"v_add_f32 v{t+i}, s{S_C0}, v{t+i}")
        for i in range(8): out.append(f"v_mul_f32 v{t+i}, v{t+i}, v{a+i}")
        for i in range(8): out.append(f"v_exp_f32 v{t+i}, v{t+i}")
        for i in range(8): out.append(f"v_mul_f32 v{a+i}, v{a+i}, v{a+8+i}")
        for i in range(8): out.append(f"v_add_f32 v{t+i}, 1.0, v{t+i}")
        for i in range(8): out.append(f"v_rcp_f32 v{t+i}, v{t+i}")
        for i in range(8): out.append(f"v_mul_f32 v{a+i}, v{a+i}, v{t+i}")
        for i in range(4): out.append(f"v_cvt_pk_bf16_f32 v{t+i}, v{a+2*i}, v{a+2*i+1}")
        out.append(f"s_add_u32 s{S_T2}, s{S_KIDX}, {kimm*1024}")
        out.append(f"buffer_store_dwordx4 {vr(t,4)}, v{VL16}, {sr(SRD_ACT,4)}, s{S_T2} offen")
        return out
    def phi_ops(a, n, t):
        out = []
        for i in range(n): out.append(f"v_mul_f32 v{t+i}, s{S_L2E}, v{a+i}")
        for i in range(n): out.append(f"v_min_f32 v{t+i}, 0, v{t+i}")
        for i in range(n): out.append(f"v_exp_f32 v{t+i}, v{t+i}")
        for i in range(n): out.append(f"v_max_f32 v{a+i}, 0, v{a+i}")
        for i in range(n): out.append(f"v_add_f32 v{t+i}, s{S_EPS6}, v{t+i}")
        for i in range(n): out.append(f"v_add_f32 v{a+i}, v{a+i}, v{t+i}")
        return out
    def kv_epi(a, head_local, tbase):
        out = []
        t = tbase
        P, Bq = t + 8, t + 16
        for half in range(2):
            aa = a + 8 * half
            for i in range(8): out.append(f"v_mul_f32 v{t+i}, s{S_L2E}, v{aa+i}")
            for i in range(8): out.append(f"v_min_f32 v{t+i}, 0, v{t+i}")
            for i in range(8): out.append(f"v_exp_f32 v{t+i}, v{t+i}")
            for i in range(8): out.append(f"v_add_f32 v{t+i}, s{S_EPS6}, v{t+i}")
            for i in range(8): out.append(f"v_max_f32 v{Bq+i}, 0, v{aa+i}")
            for i in range(8): out.append(f"v_add_f32 v{t+i}, v{Bq+i}, v{t+i}")
            for i in range(8): out.append(f"v_cndmask_b32 v{aa+i}, v{aa+i}, v{t+i}, {sr(S_KMASK,2)}")
            for i in range(4): out.append(f"v_cvt_pk_bf16_f32 v{P+4*half+i}, v{aa+2*i}, v{aa+2*i+1}")
        ONES = t
        out.append(f"v_mov_b32 v{ONES}, 0x3f803f80")
        for i in range(8): out.append(f"v_cndmask_b32 v{Bq+i}, v{P+i}, v{ONES}, {sr(S_KMASK,2)}")
        out.append(f"v_mfma_f32_32x32x16_bf16 {vr(a,16)}, {vr(P,4)}, {vr(Bq,4)}, 0")
        out.append(f"v_mfma_f32_32x32x16_bf16 {vr(a,16)}, {vr(P+4,4)}, {vr(Bq+4,4)}, {vr(a,16)}")
        out.append(f"v_and_b32 v{t+1}, 63, v{VTID}")
        out.append(f"v_lshlrev_b32 v{t+1}, 5, v{t+1}")
        out.append(f"s_lshl_b32 s{S_T2}, s{S_CH}, 12")
        out.append(f"v_add_u32 v{t+1}, s{S_T2}, v{t+1}")
        out.append(f"s_lshl_b32 s{S_T2}, s{S_TG}, 13")
        out.append(f"v_add_u32 v{t+1}, s{S_T2}, v{t+1}")
        out.append(f"v_add_u32 v{t+1}, {MISC + head_local*2048:#x}, v{t+1}")
        out.append(f"ds_write_b128 v{t+1}, {vr(a,4)}")
        out.append(f"ds_write_b128 v{t+1}, {vr(a+4,4)} offset:16")
        return out

    def run_type(isA):
        stages = []
        kinds = ["full", "full", "q" if isA else "half"]
        for ps, kd in enumerate(kinds):
            for ls in range(8 if kd == "full" else 4): stages.append((kd, ps, ls))
        NST = len(stages)
        slot = lambda s: 8 if s == 0 else (s - 1) % 8
        strides = [3584, 3584, 3072] if isA else [3072, 3584, 3584]
        dma_tok = {}
        cur_pass = [-1]
        def setup_dma_pass(ps):
            kd = kinds[ps]
            for x in setup_pass(kd, strides[ps]): e(x)
            if isA:
                if ps < 2:
                    set_srd(SRD_M0, S_WG, 512*3584); set_srd(SRD_M1, S_WU, 512*3584)
                    e(f"s_lshl_b32 s{S_COL0}, s{S_AB}, 8")
                    if ps: e(f"s_add_u32 s{S_COL0}, s{S_COL0}, 128")
                    e(f"s_mov_b32 s{S_COL1}, s{S_COL0}")
                else:
                    set_srd(SRD_M0, S_WQKV, 512*3072); set_srd(SRD_M1, S_WQKV, 512*3072)
                    e(f"s_lshl_b32 s{S_COL0}, s{S_AB}, 7")
                    e(f"s_add_u32 s{S_COL1}, s{S_COL0}, {64*3072}")
            else:
                if ps == 0:
                    set_srd(SRD_M0, S_WQKV, 512*3072); set_srd(SRD_M1, S_WQKV, 512*3072)
                    e(f"s_lshl_b32 s{S_COL0}, s{S_AB}, 7")
                    e(f"s_add_u32 s{S_COL1}, s{S_COL0}, 2048")
                    e(f"s_add_u32 s{S_COL0}, s{S_COL0}, 1024")
                else:
                    set_srd(SRD_M0, S_WG, 512*3584); set_srd(SRD_M1, S_WU, 512*3584)
                    if ps == 1:
                        e(f"s_lshl_b32 s{S_COL0}, s{S_AB}, 7")
                        e(f"s_add_u32 s{S_COL0}, s{S_COL0}, {16*128}")
                    else:
                        e(f"s_lshr_b32 s{S_COL0}, s{S_AB}, 1")
                        e(f"s_lshl_b32 s{S_COL0}, s{S_COL0}, 7")
                        e(f"s_and_b32 s{S_T}, s{S_AB}, 1")
                        e(f"s_lshl_b32 s{S_T}, s{S_T}, 6")
                        e(f"s_add_u32 s{S_COL0}, s{S_COL0}, s{S_T}")
                        e(f"s_add_u32 s{S_COL0}, s{S_COL0}, {24*128}")
                    e(f"s_mov_b32 s{S_COL1}, s{S_COL0}")
            rows = 16 if kd == "half" else 8
            e(f"s_mul_i32 s{S_T}, s{S_W}, {rows*strides[ps]}")
            e(f"s_add_u32 s{S_COL0}, s{S_COL0}, s{S_T}")
            e(f"s_add_u32 s{S_COL1}, s{S_COL1}, s{S_T}")
            e(f"s_lshl_b32 s{S_M0B}, s{S_W}, 10")
        def issue(s):
            kd, ps, ls = stages[s]
            if ps != cur_pass[0]:
                setup_dma_pass(ps); cur_pass[0] = ps
            rows = 64 if kd == "full" else 128
            for j, (srd, col, vd) in enumerate(((SRD_M0, S_COL0, VDM0), (SRD_M1, S_COL1, VDM1))):
                e(f"s_add_u32 s{S_T}, s{col}, {ls * rows * strides[ps]}")
                e(f"s_add_u32 m0, s{S_M0B}, {slot(s)*16384 + j*8192}")
                e(f"buffer_load_dwordx4 v{vd}, {sr(srd,4)}, s{S_T} offen lds")
            dma_tok[s] = p.last_vm()
        issue(0)
        if not isA:
            e(f"v_lshlrev_b32 v{VT+2}, 4, v{VTID}")
            for i in range(4): e(f"v_mov_b32 v{VT+4+i}, 0")
            e(f"s_cmp_lg_u32 s{S_RB}, 0")
            e("s_cbranch_scc1 L_k1_nozero")
            p.raw(f"buffer_store_dwordx4 {vr(VT+4,4)}, v{VT+2}, {sr(SRD_T,4)}, 0 offen sc1")
            p.raw("s_waitcnt vmcnt(0)")
            p.raw("s_barrier")
            e(f"s_lshl_b32 s{S_T}, s{S_AB}, 2")
            e(f"s_add_u32 s{S_T}, s{S_T}, 32")
            e(f"v_mov_b32 v{VT+3}, 1")
            e(f"v_mov_b32 v{VT+2}, s{S_T}")
            p.raw(f"buffer_store_dword v{VT+3}, v{VT+2}, {sr(SRD_DBG,4)}, 0 offen sc1")
            p.label("L_k1_nozero")
        ln_phase()
        for s in range(1, 9): issue(s)
        ln_math()
        stamp(p, 2, diag)
        steps = []
        for s, (kd, ps, ls) in enumerate(stages):
            for q in range(4):
                if kd == "full":
                    k = ls * 4 + q
                    steps.append(dict(stage=s, ps=ps, kd=kd, fr=[(VA0, q*2048, 512), (VA1, q*2048, 512)], x=[k, k], tile=[0, 1]))
                elif kd == "q":
                    k = ls * 8 + 2 * q
                    steps.append(dict(stage=s, ps=ps, kd=kd, fr=[(VA0, 2*q*2048, 512), (VA0, (2*q+1)*2048, 512)], x=[k, k+1], tile=[0, 0]))
                else:
                    k = ls * 8 + 2 * q
                    steps.append(dict(stage=s, ps=ps, kd=kd, fr=[(VA0, 2*q*1024, 256), (VA0, (2*q+1)*1024, 256)], x=[k, k+1], tile=[0, 0]))
        state = dict(ps=-1, win=0)
        def read_step(i):
            st = steps[i]
            sl = slot(st["stage"])
            win = (sl * 16384) // 65536
            if st["ps"] != state["ps"]:
                for x in setup_afrag(st["kd"], win * 65536): e(x)
                state["ps"], state["win"] = st["ps"], win
            elif win != state["win"]:
                d = (win - state["win"]) * 65536
                e(f"v_add_u32 v{VA0}, {d & 0xffffffff:#x}, v{VA0}")
                if st["kd"] == "full": e(f"v_add_u32 v{VA1}, {d & 0xffffffff:#x}, v{VA1}")
                state["win"] = win
            base = sl * 16384 - win * 65536
            buf = AF + (i % 3) * 8
            for f, (va, off, sec) in enumerate(st["fr"]):
                if "noread" in dbg: continue
                e(f"ds_read_b64_tr_b16 {vr(buf + 4*f, 2)}, v{va} offset:{base + off}")
                e(f"ds_read_b64_tr_b16 {vr(buf + 4*f + 2, 2)}, v{va} offset:{base + off + sec}")
        first_in_pass = set()
        def mfma_step(i):
            st = steps[i]
            buf = AF + (i % 3) * 8
            accs = ACC[st["ps"] & 1]
            for f in range(2):
                d = accs + 16 * st["tile"][f]
                key = (st["ps"], st["tile"][f])
                c = vr(d, 16) if key in first_in_pass else "0"
                first_in_pass.add(key)
                xr = vr(XB + 4 * st["x"][f], 4); ar = vr(buf + 4*f, 4)
                if (not isA) and st["ps"] == 0:
                    e(f"v_mfma_f32_32x32x16_bf16 {vr(d,16)}, {xr}, {ar}, {c}")
                else:
                    e(f"v_mfma_f32_32x32x16_bf16 {vr(d,16)}, {ar}, {xr}, {c}")
        def epi_list(ps):
            a = ACC[ps & 1]
            if isA:
                if ps < 2:
                    pre = [f"s_lshl_b32 s{S_KIDX}, s{S_AB}, 3", f"s_lshl_b32 s{S_T2}, s{S_CH}, 1", f"s_add_u32 s{S_KIDX}, s{S_KIDX}, s{S_T2}",
                           f"s_lshl_b32 s{S_KIDX}, s{S_KIDX}, 10"]
                    return pre + ffn_epi(a, 4*ps, VT) + ffn_epi(a + 16, 4*ps + 1, VT + 8)
            else:
                if ps == 0:
                    return kv_epi(a, 0, VT) + kv_epi(a + 16, 1, VT)
                if ps == 1:
                    pre = [f"s_lshl_b32 s{S_KIDX}, s{S_AB}, 2", f"s_lshl_b32 s{S_T2}, s{S_CH}, 1", f"s_add_u32 s{S_KIDX}, s{S_KIDX}, s{S_T2}",
                           f"s_lshl_b32 s{S_KIDX}, s{S_KIDX}, 10"]
                    return pre + ffn_epi(a, 64, VT) + ffn_epi(a + 16, 65, VT + 8)
            return []
        p.wait_vm_tok(dma_tok[0]); p.barrier()
        read_step(0); read_step(1)
        nsteps = len(steps)
        pend = []
        quota = 0.0
        kv_published = isA
        for i in range(nsteps):
            st = steps[i]
            s = st["stage"]
            if i % 4 == 0:
                if s + 1 < NST:
                    if "nowait" not in dbg: p.wait_vm_tok(dma_tok[s + 1])
                    if "nobar" not in dbg: p.barrier()
                    if s + 7 < NST and s >= 2:
                        if "nodma" in dbg: dma_tok[s + 7] = p.last_vm()
                        else: issue(s + 7)
                if i > 0 and steps[i-1]["ps"] != st["ps"]:
                    assert not pend
                    pend = epi_list(steps[i-1]["ps"]) if "noepi" not in dbg else []
                    nleft = sum(1 for x in steps[i:] if x["ps"] == st["ps"])
                    quota = len(pend) / max(1, nleft - 2)
                    credit = 0.0
                if s == 8: stamp(p, 5, diag)
                if s == 16: stamp(p, 6, diag)
                if (not isA) and s == 16 and not kv_published and "nokv" not in dbg:
                    kv_publish(); kv_published = True
                if (not isA) and s == 16: stamp(p, 7, diag)
                if isA and s == 18:
                    stamp(p, 7, diag)
                    if "nokv" not in dbg: kv_wait_and_load()
                    stamp(p, 8, diag)
                if (not isA) and s == 18: stamp(p, 8, diag)
            if i + 2 < nsteps: read_step(i + 2)
            mfma_step(i)
            if pend:
                credit += quota
                while pend and credit >= 1.0:
                    e(pend.pop(0)); credit -= 1.0
        assert not pend
        stamp(p, 3, diag)
        a = ACC[0]
        if isA:
            q_epi(a)
        else:
            e(f"s_lshr_b32 s{S_KIDX}, s{S_AB}, 1"); e(f"s_lshl_b32 s{S_KIDX}, s{S_KIDX}, 2")
            e(f"s_and_b32 s{S_T2}, s{S_AB}, 1"); e(f"s_lshl_b32 s{S_T2}, s{S_T2}, 1")
            e(f"s_add_u32 s{S_KIDX}, s{S_KIDX}, s{S_T2}"); e(f"s_add_u32 s{S_KIDX}, s{S_KIDX}, s{S_CH}")
            e(f"s_lshl_b32 s{S_KIDX}, s{S_KIDX}, 10")
            for x in ffn_epi(a, 96, VT): e(x)

    def kv_publish():
        p.wait(lgkm=0); p.barrier()
        e(f"s_cmp_lg_u32 s{S_W}, 0")
        e("s_cbranch_scc1 L_k1_zf_done")
        e(f"s_lshl_b32 s{S_T}, s{S_AB}, 2")
        e(f"s_add_u32 s{S_T}, s{S_T}, 32")
        e(f"v_mov_b32 v{VT+2}, s{S_T}")
        e(f"s_mov_b32 s61, 0x20000")
        p.label("L_k1_zf_poll")
        p.raw(f"s_sub_u32 s61, s61, 1")
        p.raw("s_cbranch_scc1 L_k1_zf_done")
        p.raw(f"buffer_load_dword v{VT+3}, v{VT+2}, {sr(SRD_DBG,4)}, 0 offen sc1")
        p.raw("s_waitcnt vmcnt(0)")
        p.raw(f"v_readfirstlane_b32 s{S_T}, v{VT+3}")
        p.raw("s_nop 3")
        p.raw(f"s_cmp_eq_u32 s{S_T}, 0")
        p.raw("s_cbranch_scc1 L_k1_zf_poll")
        p.label("L_k1_zf_done")
        p.barrier()
        t = VT
        e(f"v_lshrrev_b32 v{t}, 4, v{VTID}")
        e(f"v_add_u32 v{t}, 16, v{t}")
        e(f"v_and_b32 v{t}, 31, v{t}")
        e(f"v_bfe_u32 v{t+1}, v{VTID}, 2, 1")
        e(f"v_lshl_add_u32 v{t}, v{t+1}, 5, v{t}")
        e(f"v_lshlrev_b32 v{t}, 5, v{t}")
        e(f"v_bfe_u32 v{t+1}, v{VTID}, 3, 1")
        e(f"v_lshlrev_b32 v{t+1}, 2, v{t+1}")
        e(f"v_and_b32 v{t+2}, 3, v{VTID}")
        e(f"v_add_u32 v{t+1}, v{t+1}, v{t+2}")
        e(f"v_lshl_add_u32 v{t}, v{t+1}, 2, v{t}")
        e(f"v_add_u32 v{t}, {MISC:#x}, v{t}")
        e(f"v_lshlrev_b32 v{t+1}, 2, v{VTID}")
        for h in range(4):
            for g in range(4):
                e(f"ds_read_b32 v{t+4+4*h+g}, v{t} offset:{g*8192 + h*2048}")
        for h in range(4):
            b = t + 4 + 4*h
            e(f"v_add_f32 v{b}, v{b}, v{b+1}")
            e(f"v_add_f32 v{b+2}, v{b+2}, v{b+3}")
            e(f"v_add_f32 v{b}, v{b}, v{b+2}")
        e(f"s_mov_b32 s{S_T}, 4096")
        for h in range(4): e(f"buffer_atomic_add_f32 v{t+4+4*h}, v{t+1}, {sr(SRD_T,4)}, {'s%d' % S_T if h >= 2 else '0'} offen offset:{(h&1)*2048}")
        p.wait(vm=0); p.barrier()
        e(f"s_cmp_lg_u32 s{S_W}, 0")
        e("s_cbranch_scc1 L_k1_cnt_done")
        e(f"s_lshl_b32 s{S_T}, s{S_AB}, 2")
        e(f"v_mov_b32 v{t}, s{S_T}")
        e(f"v_mov_b32 v{t+1}, 1")
        e(f"v_cmp_eq_u32 vcc, 0, v{VTID}")
        e("s_and_saveexec_b64 s[62:63], vcc")
        p.raw(f"buffer_atomic_add v{t+1}, v{t}, {sr(SRD_DBG,4)}, 0 offen")
        p.raw("s_mov_b64 exec, s[62:63]")
        p.raw("s_waitcnt vmcnt(0)")
        p.label("L_k1_cnt_done")
    AH = VT + 18
    def kv_wait_and_load():
        e(f"s_cmp_lg_u32 s{S_W}, 0")
        e("s_cbranch_scc1 L_k1_kv_done")
        e(f"s_lshl_b32 s{S_T}, s{S_AB}, 2")
        e(f"v_mov_b32 v{VT+26}, s{S_T}")
        e(f"s_mov_b32 s61, 0x20000")
        p.label("L_k1_kv_poll")
        p.raw(f"s_sub_u32 s61, s61, 1")
        p.raw("s_cbranch_scc1 L_k1_kv_done")
        p.raw(f"buffer_load_dword v{VT+27}, v{VT+26}, {sr(SRD_DBG,4)}, 0 offen sc1")
        p.raw("s_waitcnt vmcnt(0)")
        p.raw(f"v_readfirstlane_b32 s{S_T}, v{VT+27}")
        p.raw("s_nop 3")
        p.raw(f"s_cmp_lt_u32 s{S_T}, 16")
        p.raw("s_cbranch_scc1 L_k1_kv_poll")
        p.label("L_k1_kv_done")
        p.barrier()
    def q_epi(a):
        t = VT
        e(f"v_and_b32 v{t}, 63, v{VTID}")
        e(f"v_and_b32 v{t+1}, 31, v{t}")
        e(f"v_lshrrev_b32 v{t}, 5, v{t}")
        e(f"v_lshlrev_b32 v{t+1}, 6, v{t+1}")
        e(f"v_lshl_add_u32 v{t+1}, v{t}, 4, v{t+1}")
        e(f"s_lshl_b32 s{S_T}, s{S_CH}, 12")
        TL = VT + 8
        for hs in range(2):
            e(f"buffer_load_dwordx4 {vr(TL + 8*hs, 4)}, v{t+1}, {sr(SRD_T,4)}, s{S_T} offen offset:{hs*2048} sc1")
            e(f"buffer_load_dwordx4 {vr(TL + 8*hs + 4, 4)}, v{t+1}, {sr(SRD_T,4)}, s{S_T} offen offset:{hs*2048 + 32} sc1")
        for half in range(2):
            for x in phi_ops(a + 8*half, 8, VT): e(x)
        PQ = VT + 24
        for i in range(8): e(f"v_cvt_pk_bf16_f32 v{PQ+i}, v{a+2*i}, v{a+2*i+1}")
        AHf = VT
        for hs in range(2):
            for i in range(4): e(f"v_cvt_pk_bf16_f32 v{AHf + 4*hs + i}, v{TL + 8*hs + 2*i}, v{TL + 8*hs + 2*i + 1}")
        D = [ACC[1], ACC[1] + 16]
        for hs in range(2):
            e(f"v_mfma_f32_32x32x16_bf16 {vr(D[hs],16)}, {vr(AHf + 4*hs, 4)}, {vr(PQ + 4*hs, 4)}, 0")
        e(f"s_lshl_b32 s{S_KIDX}, s{S_AB}, 2"); e(f"s_lshl_b32 s{S_T2}, s{S_CH}, 1")
        e(f"s_add_u32 s{S_KIDX}, s{S_KIDX}, s{S_T2}"); e(f"s_add_u32 s{S_KIDX}, s{S_KIDX}, 112")
        e(f"s_lshl_b32 s{S_KIDX}, s{S_KIDX}, 10")
        for hs in range(2):
            d = D[hs]
            e(f"v_add_f32 v{d+8}, s{S_EPS6}, v{d+8}")
            e(f"v_rcp_f32 v{d+8}, v{d+8}")
            for i in range(8): e(f"v_mul_f32 v{d+i}, v{d+i}, v{d+8}")
            for i in range(4): e(f"v_cvt_pk_bf16_f32 v{d+12+i}, v{d+2*i}, v{d+2*i+1}")
            e(f"buffer_store_dwordx4 {vr(d+12,4)}, v{VL16}, {sr(SRD_ACT,4)}, s{S_KIDX} offen offset:{hs*1024}")

    sv = (list(p.lgkm), list(p.vm), p.vm_count)
    run_type(False)
    if diag:
        p.force_wait(vm=0); stamp(p, 4, diag)
    e("s_branch L_k1_fin")
    p.label("L_k1_typeA")
    p.lgkm, p.vm, p.vm_count = list(sv[0]), list(sv[1]), sv[2]
    run_type(True)
    if diag:
        p.force_wait(vm=0); stamp(p, 4, diag)
    p.label("L_k1_fin")
    if diag: write_stamps(p, 9, diag, S_WS, VT, VTID)
    p.label("L_k1_end")
    p.raw("s_endpgm")
    p.hazards()
    return kernel_text(name, p.text(), 256)

if __name__ == "__main__":
    import sys
    from k2 import gen_k2
    NAME = "recurrent_scan__linear_attn_block__glu_gated_geglu__prompt"
    for diag, fn in ((False, "v1.s"), (True, "v1_diag.s")):
        hdr = (f"; @launch kernel=p1_kernel grid=(256,1,1) block=(512,1,1) lds=163840\n"
               f"; @launch kernel={NAME}_kernel grid=(256,1,1) block=(512,1,1) lds=163840\n"
               ".amdgcn_target \"amdgcn-amd-amdhsa--gfx950\"\n")
        open("dev/" + fn, "w").write(hdr + gen_k1("p1_kernel", diag=diag) + gen_k2(NAME + "_kernel", diag=False))
    for nm, dbg in (("a", ("nokv",)), ("b", ("nokv", "noepi")), ("c", ("nokv", "noepi", "nodma")), ("d", ("nokv", "noepi", "nodma", "nobar", "nowait")), ("e", ("nokv", "noepi", "nodma", "nobar", "nowait", "noread")), ("f", ("nokv", "noepi", "noread"))):
        hdr = ("; @launch kernel=p1_kernel grid=(256,1,1) block=(512,1,1) lds=163840\n.amdgcn_target \"amdgcn-amd-amdhsa--gfx950\"\n")
        open(f"k1x_{nm}.s", "w").write(hdr + gen_k1("p1_kernel", diag=True, dbg=dbg))
    for nm, dbg in (("b", ("nokv", "noepi")), ("a", ("nokv",))):
        hdr = ("; @launch kernel=p1_kernel grid=(256,1,1) block=(512,1,1) lds=163840\n.amdgcn_target \"amdgcn-amd-amdhsa--gfx950\"\n")
        open(f"k1x_{nm}clk.s", "w").write(hdr + gen_k1("p1_kernel", diag="clk", dbg=dbg))
    print("written")
```

```python
import re
from asmgen import *
import k1, k2
NAME = "recurrent_scan__linear_attn_block__glu_gated_geglu__prompt"
M = NAME + "_kernel"
L = lambda k: f"; @launch kernel={k} grid=(256,1,1) block=(512,1,1) lds=163840\n"
tgt = '.amdgcn_target "amdgcn-amd-amdhsa--gfx950"\n'
t1 = k1.gen_k1("p1_kernel", diag=True)
t2 = k2.gen_k2(M, diag=True)
t2 = t2.replace(f"s_add_u32 s92, s92, {k2.DIAG_OFF}", f"s_add_u32 s92, s92, {k2.DIAG_OFF + 0x10000}")
rep = f"""    s_cmp_lg_u32 s2, 0
    s_cbranch_scc1 L_rep_end
    s_load_dwordx2 s[4:5], s[0:1], 72
    s_load_dwordx2 s[6:7], s[0:1], 64
    v_lshlrev_b32 v1, 3, v0
    v_cmp_gt_u32 vcc, 16, v0
    s_and_saveexec_b64 s[10:11], vcc
    s_waitcnt lgkmcnt(0)
    s_add_u32 s4, s4, {k2.DIAG_OFF + 9*128}
    s_addc_u32 s5, s5, 0
    global_load_dword v2, v1, s[4:5]
    v_mov_b32 v5, 0
    global_load_dword v3, v5, s[4:5]
    s_add_u32 s4, s4, 0x10000
    s_addc_u32 s5, s5, 0
    global_load_dword v4, v1, s[4:5]
    s_waitcnt vmcnt(0)
    v_sub_u32 v2, v2, v3
    v_sub_u32 v4, v4, v3
    v_lshlrev_b32 v6, 2, v0
    v_cmp_gt_u32 vcc, 9, v0
    s_and_saveexec_b64 s[12:13], vcc
    global_store_dword v6, v2, s[6:7]
    s_mov_b64 exec, s[12:13]
    v_cmp_gt_u32 vcc, 6, v0
    s_and_saveexec_b64 s[12:13], vcc
    global_store_dword v6, v4, s[6:7] offset:36
    s_waitcnt vmcnt(0)
L_rep_end:
    s_endpgm
"""
t3 = kernel_text("rep_kernel", rep, 32)
open("d1.s", "w").write(L("p1_kernel") + L(M) + "; @launch kernel=rep_kernel grid=(1,1,1) block=(64,1,1) lds=0\n" + tgt + t1 + t2 + t3)
```

```python
from asmgen import *
import struct, sys
def f2u(x): return struct.unpack("<I", struct.pack("<f", x))[0]

NAME = "recurrent_scan__linear_attn_block__glu_gated_geglu__prompt"
ACT_G_BYTES = 144 * 1024
T_OFF    = 0xA80000
TP = 4352
SYNC_OFF = 0xA20000
STAT_OFF = 0xA30000
CSP_OFF  = 0xA40000
DIAG_OFF = 0xC00000
LOG2E = 0x3fb8aa3b
GC0 = -2.0 * 0.7978845608028654 * 1.4426950408889634
HUGE = 0x7ff00000

class Cfg:
    diag = False
    prefetch = True
    touch = False
    LA = 3
    BLA = 8
    KVPUB = 16
    KVCNT = 16
    Q2RATE = 2
    dbg = ()

def gen(cfg):
    p = Prog(); e = p.e; raw = p.raw
    diag = cfg.diag
    def stamp(i, pro=False, force=False):
        if getattr(cfg, "stages", None) and not force and i not in (0,): return
        if not force and ("pro" in cfg.dbg) != pro and i in (2, 3, 4, 5, 6, 7): return
        if diag == "clk": raw(f"s_memtime s[{80+2*i}:{81+2*i}]")
        elif diag: raw(f"s_memrealtime s[{80+2*i}:{81+2*i}]")
    NSTAMP = 9
    XB, ACC, AF = 0, [128, 160], 192
    VA0, VA1, VDM0, VDM1 = 216, 217, 218, 219
    NEGM, C0P, C1P, IRS2, RSTD = 220, 221, 222, 223, 224
    PA, PD = 225, 252
    VT = 226
    SU0 = VT + 23
    VDMA2, VL16, VTID = 253, 254, 255
    S_X, S_WQKV, S_WD, S_OUT, S_WO = 4, 6, 8, 10, 12
    SRD_X, SRD_M0, SRD_M1, SRD_ACT, SRD_T, SRD_WS2, SRD_WA, SRD_WB = 16, 20, 24, 28, 32, 36, 40, 44
    S_R2, S_TH2, S_OA, S_OB = 48, 49, 50, 51
    S_WG, S_WU, S_DBG, S_WS = 52, 54, 56, 58
    S_W, S_TG, S_CH, S_RB, S_CB, S_AB = 60, 61, 62, 63, 64, 65
    S_T, S_T2, S_T3, S_M0B, S_COL0, S_COL1 = 66, 67, 68, 69, 14, 15
    S_KIDX = 3
    S_L2E, S_EPS6, S_C0, S_M0B2, S_TB2, S_CB2 = 70, 71, 72, 73, 74, 75
    S_EX, S_SPIN, S_CCS = 76, 78, 79
    S_KM = 98
    S_ROT, S_ROTB = 100, 101
    MISC = 9 * 16384
    L_CS, L_RS, L_NM, L_NMR, L_T = MISC, MISC + 2048, MISC + 2560, MISC + 3072, MISC + 4096
    KVP = 7 * 16384

    def set_srd(srd, sptr, nbytes):
        e(f"s_mov_b32 s{srd}, s{sptr}"); e(f"s_mov_b32 s{srd+1}, s{sptr+1}")
        e(f"s_mov_b32 s{srd+2}, {nbytes}"); e(f"s_mov_b32 s{srd+3}, 0x20000")
    def set_srd_off(srd, sptr, soff, nbytes):
        e(f"s_add_u32 s{srd}, s{sptr}, s{soff}"); e(f"s_addc_u32 s{srd+1}, s{sptr+1}, 0")
        e(f"s_mov_b32 s{srd+2}, {nbytes}"); e(f"s_mov_b32 s{srd+3}, 0x20000")
    uid = [0]
    def nid():
        uid[0] += 1; return uid[0]
    def spin(load_text, cmp_text):
        n = nid()
        raw(f"s_mov_b32 s{S_SPIN}, 0x40000")
        p.label(f"L_spin{n}")
        raw(load_text); raw("s_waitcnt vmcnt(0)")
        raw(f"v_readfirstlane_b32 s{S_T}, v{PD}"); raw("s_nop 3")
        raw(cmp_text); raw(f"s_cbranch_scc1 L_spun{n}")
        raw(f"s_sub_u32 s{S_SPIN}, s{S_SPIN}, 1"); raw(f"s_cbranch_scc0 L_spin{n}")
        p.label(f"L_spun{n}")
    def poll(line_expr, target):
        for x in line_expr: e(x)
        e(f"s_lshl_b32 s{S_T}, s{S_T}, 7")
        e(f"v_mov_b32 v{PA}, s{S_T}")
        spin(f"buffer_load_dword v{PD}, v{PA}, {sr(SRD_WS2,4)}, 0 offen sc1", f"s_cmp_ge_u32 s{S_T}, {target}")
    def poll_dbg(off_expr):
        for x in off_expr: e(x)
        e(f"v_mov_b32 v{PA}, s{S_T}")
        spin(f"global_load_dword v{PD}, v{PA}, {sr(S_DBG,2)} sc1", f"s_cmp_lg_u32 s{S_T}, 0")
    def cnt_add(line_expr, PA=PA, PD=PD):
        n = nid()
        e(f"s_cmp_lg_u32 s{S_W}, 0")
        e(f"s_cbranch_scc1 L_cnt{n}")
        for x in line_expr: raw(x)
        raw(f"s_lshl_b32 s{S_T}, s{S_T}, 7")
        raw(f"v_mov_b32 v{PA}, s{S_T}"); raw(f"v_mov_b32 v{PD}, 1")
        raw(f"s_mov_b64 {sr(S_EX,2)}, exec"); raw(f"s_mov_b64 exec, 1")
        raw(f"buffer_atomic_add v{PD}, v{PA}, {sr(SRD_WS2,4)}, 0 offen")
        raw(f"s_mov_b64 exec, {sr(S_EX,2)}")
        raw("s_nop 1")
        p.label(f"L_cnt{n}")

    e("s_cmp_ge_u32 s2, 256")
    e("s_cbranch_scc1 L_end")
    stamp(0)
    e(f"s_load_dwordx4 s[4:7], s[0:1], 0")
    e(f"s_load_dwordx4 s[56:59], s[0:1], 64")
    e(f"s_load_dwordx4 s[52:55], s[0:1], 32")
    e(f"s_load_dwordx4 s[8:11], s[0:1], 48")
    e(f"s_load_dwordx2 s[12:13], s[0:1], 16")
    e(f"v_mov_b32 v{VTID}, v0")
    e(f"v_lshrrev_b32 v{VT}, 6, v0")
    L = VT + 1
    e(f"v_and_b32 v{L}, 63, v0")
    e(f"v_readfirstlane_b32 s{S_W}, v{VT}")
    e(f"s_and_b32 s{S_T}, s2, 7")
    e(f"s_lshr_b32 s{S_T2}, s2, 3")
    e(f"s_and_b32 s{S_RB}, s{S_T}, 1"); e(f"s_lshl_b32 s{S_RB}, s{S_RB}, 3")
    e(f"s_and_b32 s{S_CB}, s{S_T2}, 7"); e(f"s_add_u32 s{S_RB}, s{S_RB}, s{S_CB}")
    e(f"s_lshr_b32 s{S_CB}, s{S_T}, 1"); e(f"s_lshl_b32 s{S_CB}, s{S_CB}, 2")
    e(f"s_lshr_b32 s{S_T3}, s{S_T2}, 3"); e(f"s_add_u32 s{S_CB}, s{S_CB}, s{S_T3}")
    e(f"s_lshr_b32 s{S_AB}, s{S_CB}, 1")
    e(f"s_and_b32 s{S_CB2}, s{S_T2}, 7")
    e(f"s_lshl_b32 s{S_TB2}, s{S_T}, 2"); e(f"s_add_u32 s{S_TB2}, s{S_TB2}, s{S_T3}")
    e(f"s_and_b32 s{S_TG}, s{S_W}, 3"); e(f"s_lshr_b32 s{S_CH}, s{S_W}, 2")
    e(f"s_lshr_b32 s{S_R2}, s{S_W}, 1"); e(f"s_and_b32 s{S_TH2}, s{S_W}, 1")
    e(f"v_lshlrev_b32 v{VL16}, 4, v{L}")
    e(f"s_mov_b32 s{S_L2E}, {LOG2E:#x}"); e(f"s_mov_b32 s{S_EPS6}, {f2u(1e-6):#x}"); e(f"s_mov_b32 s{S_C0}, {f2u(GC0):#x}")
    XV = VT + 16
    XA = VT + 20
    e(f"v_lshrrev_b32 v{VT+2}, 4, v{L}")
    e(f"v_and_b32 v{VT+3}, 15, v{L}")
    e(f"v_xor_b32 v{VT+3}, v{VT+3}, v{VT+2}")
    e(f"v_lshlrev_b32 v{XV}, 10, v{VT+2}")
    e(f"v_lshl_add_u32 v{XV}, v{VT+3}, 4, v{XV}")
    for j in range(1, 4): e(f"v_xor_b32 v{XV+j}, {64*j}, v{XV}")
    CJ = VT + 4
    e(f"s_cmp_ge_u32 s{S_W}, 4")
    e(f"s_cselect_b32 s{S_T}, 2, 3")
    e(f"s_cselect_b32 s{S_T2}, 3, 7")
    e(f"v_lshrrev_b32 v{CJ+1}, s{S_T}, v{L}")
    e(f"v_and_b32 v{CJ+2}, s{S_T2}, v{L}")
    p.wait(lgkm=0)
    stamp(2, True)
    e(f"s_lshl_b32 s{S_T}, s{S_RB}, 17")
    if "hot" in cfg.dbg: e(f"s_mov_b32 s{S_T}, 0")
    set_srd_off(SRD_X, S_X, S_T, 128 * 1024)
    e(f"s_and_b32 s{S_T}, s{S_CB}, 1")
    e(f"s_cmp_eq_u32 s{S_T}, 1")
    e("s_cbranch_scc1 L_typeA")

    SJ, ST8, SUM, SQ = VT, VT + 4, VT + 12, VT + 13
    ZF = VT + 14
    CD, CA, CF = 160, 176, 160
    tk = {}
    def zero_stores(isA):
        e(f"s_mov_b32 s{S_T}, {SYNC_OFF}")
        set_srd_off(SRD_WS2, S_WS, S_T, CSP_OFF - SYNC_OFF + 16*16*1280)
        e(f"s_mul_i32 s{S_T}, s{S_AB}, {16*TP}"); e(f"s_add_u32 s{S_T}, s{S_T}, {T_OFF}")
        set_srd_off(SRD_T, S_WS, S_T, 16*TP)
        e(f"v_lshlrev_b32 v{VT+8}, 4, v{VTID}")
        for i in range(4): e(f"v_mov_b32 v{176+i}, 0")
        e(f"s_cmp_eq_u32 s2, 0"); e(f"s_cselect_b32 s{S_T}, 0, {HUGE:#x}")
        e(f"v_add_u32 v{VT+9}, s{S_T}, v{VT+8}")
        e(f"buffer_store_dwordx4 v[176:179], v{VT+9}, {sr(SRD_WS2,4)}, 0 offen sc1")
        e(f"s_mov_b32 s{S_T}, 8192")
        e(f"buffer_store_dwordx4 v[176:179], v{VT+9}, {sr(SRD_WS2,4)}, s{S_T} offen sc1")
    def side_loads(isA):
        e(f"s_lshl_b32 s{S_T}, s{S_CB}, 3"); e(f"s_add_u32 s{S_T}, s{S_T}, s{S_W}"); e(f"s_lshl_b32 s{S_T}, s{S_T}, 10")
        e(f"buffer_load_dwordx4 {vr(SJ,4)}, v{VL16}, {sr(SRD_X,4)}, s{S_T} offen")
        SR = SRD_ACT
        tbl = ([(S_WG, 3584, 256, 0, 0), (S_WU, 3584, 256, 0, 0), (S_WG, 3584, 256, 128, 0), (S_WU, 3584, 256, 128, 0),
                (S_WQKV, 3072, 128, 0, 0), (S_WQKV, 3072, 128, 64, 0)] if isA else
               [(S_WQKV, 3072, 128, 1024, 0), (S_WQKV, 3072, 128, 2048, 0), (S_WG, 3584, 128, 16*128, 0), (S_WU, 3584, 128, 16*128, 0),
                (S_WG, 3584, 0, 24*128, 1), (S_WU, 3584, 0, 24*128, 1)])
        SC = S_KIDX
        e(f"s_mov_b32 s{SR}, s{S_WQKV}"); e(f"s_mov_b32 s{SR+1}, s{S_WQKV+1}")
        e(f"s_mov_b32 s{S_T3}, 3072"); e(f"s_mov_b32 s{SC}, 0")
        for w, (ptr, stride, mul, add, hmul) in enumerate(tbl):
            n = nid()
            e(f"s_cmp_lg_u32 s{S_W}, {w}")
            e(f"s_cbranch_scc1 L_cjs{n}")
            e(f"s_mov_b32 s{SR}, s{ptr}"); e(f"s_mov_b32 s{SR+1}, s{ptr+1}")
            e(f"s_mov_b32 s{S_T3}, {stride}")
            if hmul:
                e(f"s_lshr_b32 s{SC}, s{S_AB}, 1"); e(f"s_lshl_b32 s{SC}, s{SC}, 7")
                e(f"s_and_b32 s{S_T}, s{S_AB}, 1"); e(f"s_lshl_b32 s{S_T}, s{S_T}, 6")
                e(f"s_add_u32 s{SC}, s{SC}, s{S_T}")
            else:
                e(f"s_mul_i32 s{SC}, s{S_AB}, {mul}")
            e(f"s_add_u32 s{SC}, s{SC}, {add}")
            p.label(f"L_cjs{n}")
        e(f"s_mul_i32 s{SR+2}, s{S_T3}, 512")
        e(f"s_mov_b32 s{SR+3}, 0x20000")
        e(f"v_mul_lo_u32 v{CJ}, v{CJ+1}, s{S_T3}")
        e(f"v_lshl_add_u32 v{CJ}, v{CJ+2}, 4, v{CJ}")
        e(f"s_cmp_ge_u32 s{S_W}, 6"); e(f"s_cselect_b32 s{S_T}, {HUGE:#x}, 0")
        e(f"v_add_u32 v{CJ}, s{S_T}, v{CJ}")
        e(f"s_lshl_b32 s{S_T}, s{S_RB}, 5"); e(f"s_mul_i32 s{S_T}, s{S_T}, s{S_T3}")
        e(f"s_add_u32 s{SC}, s{SC}, s{S_T}")
        e(f"s_cmp_ge_u32 s{S_W}, 4"); e(f"s_cselect_b32 s{S_T}, 4, 3")
        e(f"s_lshl_b32 s{S_T3}, s{S_T3}, s{S_T}")
        for j in range(4):
            if j == 2:
                e(f"s_and_b32 s{S_T}, s{S_W}, 6"); e(f"s_cmp_eq_u32 s{S_T}, 4"); e(f"s_cselect_b32 s{S_T}, {HUGE:#x}, 0")
                e(f"v_add_u32 v{CJ}, s{S_T}, v{CJ}")
            e(f"buffer_load_dwordx4 {vr(CD+4*j,4)}, v{CJ}, {sr(SR,4)}, s{SC} offen")
            if j < 3: e(f"s_add_u32 s{SC}, s{SC}, s{S_T3}")
        e(f"s_lshl_b32 s{S_T}, s{S_RB}, 2"); e(f"s_add_u32 s{S_T}, s{S_T}, s{S_TG}"); e(f"s_mul_i32 s{S_T}, s{S_T}, {ACT_G_BYTES}")
        set_srd_off(SRD_ACT, S_WS, S_T, ACT_G_BYTES)

    def seg_table(isA):
        return ([(S_WG, 3584, 256, 0, 0), (S_WU, 3584, 256, 0, 0), (S_WG, 3584, 256, 128, 0), (S_WU, 3584, 256, 128, 0),
                 (S_WQKV, 3072, 128, 0, 0), None] if isA else
                [(S_WQKV, 3072, 128, 1024, 0), (S_WQKV, 3072, 128, 2048, 0), (S_WG, 3584, 128, 16*128, 0), (S_WU, 3584, 128, 16*128, 0),
                 (S_WG, 3584, 0, 24*128, 1), (S_WU, 3584, 0, 24*128, 1)])
    def touch_w(isA, segs, row0, nrows8, dst, SR, t):
        tbl = seg_table(isA)
        e(f"s_mov_b32 s{SR}, s{S_WQKV}"); e(f"s_mov_b32 s{SR+1}, s{S_WQKV+1}"); e(f"s_mov_b32 s{SR+2}, 0"); e(f"s_mov_b32 s{SR+3}, 0x20000")
        e(f"s_mov_b32 s{S_T3}, 0"); e(f"s_mov_b32 s{S_T2}, 0")
        for k, sg in enumerate(segs):
            if tbl[sg] is None: continue
            ptr, stride, mul, add, hmul = tbl[sg]
            n = nid()
            e(f"s_cmp_lg_u32 s{S_W}, {k}"); e(f"s_cbranch_scc1 L_tw{n}")
            e(f"s_mov_b32 s{SR}, s{ptr}"); e(f"s_mov_b32 s{SR+1}, s{ptr+1}"); e(f"s_mov_b32 s{SR+2}, {512*stride}")
            e(f"s_mov_b32 s{S_T3}, {stride}")
            if hmul:
                e(f"s_lshr_b32 s{S_T2}, s{S_AB}, 1"); e(f"s_lshl_b32 s{S_T2}, s{S_T2}, 7")
            else:
                e(f"s_mul_i32 s{S_T2}, s{S_AB}, {mul}")
            e(f"s_add_u32 s{S_T2}, s{S_T2}, {add}")
            p.label(f"L_tw{n}")
        e(f"v_and_b32 v{t}, 63, v{VTID}")
        e(f"v_lshlrev_b32 v{t+1}, 3, v{t}"); e(f"s_and_b32 s{S_T}, s{S_RB}, 7"); e(f"s_add_u32 s{S_T}, s{S_T}, {row0}")
        e(f"v_add_u32 v{t+1}, s{S_T}, v{t+1}")
        e(f"v_mul_lo_u32 v{t+1}, v{t+1}, s{S_T3}")
        if nrows8 < 64:
            e(f"v_mov_b32 v{t+2}, {HUGE:#x}"); e(f"v_cmp_gt_u32 vcc, {nrows8}, v{t}"); e(f"v_cndmask_b32 v{t+1}, v{t+2}, v{t+1}, vcc")
        e(f"buffer_load_dword v{dst}, v{t+1}, {sr(SR,4)}, s{S_T2} offen")
    def touch_x(chunks, w0, dst, t):
        e(f"v_and_b32 v{t}, 63, v{VTID}")
        e(f"v_lshrrev_b32 v{t+1}, 1, v{t}"); e(f"v_lshlrev_b32 v{t+1}, 10, v{t+1}")
        e(f"v_and_b32 v{t}, 1, v{t}"); e(f"v_lshl_add_u32 v{t+1}, v{t}, 7, v{t+1}")
        e(f"s_and_b32 s{S_T}, s{S_CB}, 3"); e(f"s_lshl_b32 s{S_T}, s{S_T}, 15")
        e(f"s_sub_u32 s{S_T2}, s{S_W}, {w0}"); e(f"s_add_u32 s{S_T3}, s{S_T2}, {chunks[0]}"); e(f"s_lshl_b32 s{S_T3}, s{S_T3}, 8")
        e(f"s_add_u32 s{S_T}, s{S_T}, s{S_T3}")
        e(f"s_cmp_lt_u32 s{S_T2}, {len(chunks)}"); e(f"s_cselect_b32 s{S_T2}, 0, {HUGE:#x}")
        e(f"v_add_u32 v{t+1}, s{S_T2}, v{t+1}")
        e(f"buffer_load_dword v{dst}, v{t+1}, {sr(SRD_X,4)}, s{S_T} offen")
    def touch_w2(dst, SR, t):
        e(f"s_lshr_b32 s{S_T3}, s2, 3")
        e(f"v_lshlrev_b32 v{t}, 3, v{VL16}")
        e(f"s_cmp_eq_u32 s{S_W}, 7")
        e(f"s_cselect_b32 s{SR}, s{S_WO}, s{S_WD}"); e(f"s_cselect_b32 s{SR+1}, s{S_WO+1}, s{S_WD+1}")
        e(f"s_mov_b32 s{S_T}, {512*1024}"); e(f"s_mov_b32 s{S_T2}, {1792*1024}"); e(f"s_cselect_b32 s{SR+2}, s{S_T}, s{S_T2}"); e(f"s_mov_b32 s{SR+3}, 0x20000")
        e(f"s_mul_i32 s{S_T}, s{S_T3}, {56*1024}"); e(f"s_lshl_b32 s{S_T2}, s{S_W}, 13"); e(f"s_add_u32 s{S_T}, s{S_T}, s{S_T2}")
        e(f"s_lshl_b32 s{S_T2}, s{S_T3}, 14")
        e(f"s_cmp_eq_u32 s{S_W}, 7"); e(f"s_cselect_b32 s{S_T}, s{S_T2}, s{S_T}")
        e(f"buffer_load_dword v{dst}, v{t}, {sr(SR,4)}, s{S_T} offen")
        e(f"s_mov_b32 s{SR}, s{S_WO}"); e(f"s_mov_b32 s{SR+1}, s{S_WO+1}"); e(f"s_mov_b32 s{SR+2}, {512*1024}")
        e(f"s_lshl_b32 s{S_T}, s{S_T3}, 14"); e(f"s_add_u32 s{S_T}, s{S_T}, 8192")
        e(f"s_cmp_eq_u32 s{S_W}, 0"); e(f"s_cselect_b32 s{S_T2}, 0, {HUGE:#x}")
        e(f"v_add_u32 v{t}, s{S_T2}, v{t}")
        e(f"buffer_load_dword v{dst}, v{t}, {sr(SR,4)}, s{S_T} offen")

    def mall_prefetch():
        SR = SRD_WB
        pt = [(S_WD, 56, 1792*1024), (S_WO, 16, 512*1024)]
        e(f"s_mov_b32 s{SR}, s{S_WD}"); e(f"s_mov_b32 s{SR+1}, s{S_WD+1}"); e(f"s_mov_b32 s{SR+2}, 0"); e(f"s_mov_b32 s{SR+3}, 0x20000"); e(f"s_mov_b32 s{S_T3}, 0")
        for w, (ptr, nl, nbytes) in enumerate(pt):
            n = nid()
            e(f"s_cmp_lg_u32 s{S_W}, {w}")
            e(f"s_cbranch_scc1 L_pfs{n}")
            e(f"s_mov_b32 s{SR}, s{ptr}"); e(f"s_mov_b32 s{SR+1}, s{ptr+1}"); e(f"s_mov_b32 s{SR+2}, {nbytes}")
            e(f"s_mul_i32 s{S_T3}, s2, {nl*128}")
            p.label(f"L_pfs{n}")
        e(f"v_lshlrev_b32 v{C1P}, 3, v{VL16}")
        e(f"buffer_load_dword v{C0P}, v{C1P}, {sr(SR,4)}, s{S_T3} offen")

    def s_job():
        o = []; a = o.append
        t = ST8
        for i in range(4):
            a(f"v_lshlrev_b32 v{t+2*i}, 16, v{SJ+i}"); a(f"v_and_b32 v{t+2*i+1}, 0xffff0000, v{SJ+i}")
        a(f"v_add_f32 v{SUM}, v{t}, v{t+1}"); a(f"v_mul_f32 v{SQ}, v{t}, v{t}")
        for i in range(2, 8): a(f"v_add_f32 v{SUM}, v{SUM}, v{t+i}")
        for i in range(1, 8): a(f"v_fma_f32 v{SQ}, v{t+i}, v{t+i}, v{SQ}")
        for d in ("row_shr:1", "row_shr:2", "row_shr:4", "row_shr:8"):
            a(f"v_mov_b32_dpp v{t}, v{SUM} {d} row_mask:0xf bank_mask:0xf bound_ctrl:1")
            a(f"v_mov_b32_dpp v{t+1}, v{SQ} {d} row_mask:0xf bank_mask:0xf bound_ctrl:1")
            a(f"v_add_f32 v{SUM}, v{SUM}, v{t}"); a(f"v_add_f32 v{SQ}, v{SQ}, v{t+1}")
        for d, m in (("row_bcast:15", "0xa"), ("row_bcast:31", "0xc")):
            a(f"v_mov_b32 v{t}, 0"); a(f"v_mov_b32 v{t+1}, 0")
            a(f"v_mov_b32_dpp v{t}, v{SUM} {d} row_mask:{m} bank_mask:0xf")
            a(f"v_mov_b32_dpp v{t+1}, v{SQ} {d} row_mask:{m} bank_mask:0xf")
            a(f"v_add_f32 v{SUM}, v{SUM}, v{t}"); a(f"v_add_f32 v{SQ}, v{SQ}, v{t+1}")
        a(f"v_mul_f32 v{SUM}, {f2u(1/512):#x}, v{SUM}"); a(f"v_mul_f32 v{SQ}, {f2u(1/512):#x}, v{SQ}")
        a(f"v_fma_f32 v{SQ}, -v{SUM}, v{SUM}, v{SQ}"); a(f"v_add_f32 v{SQ}, {f2u(1e-5):#x}, v{SQ}")
        a(f"v_rsq_f32 v{t+3}, v{SQ}")
        a(f"v_sub_f32 v{t+2}, 0, v{SUM}")
        a(f"v_and_b32 v{t+4}, 63, v{VTID}")
        a((f"s_lshl_b32 s{S_T3}, s{S_RB}, 7", f"s_lshl_b32 s{S_T2}, s{S_CB}, 3", f"s_add_u32 s{S_T3}, s{S_T3}, s{S_T2}", f"s_add_u32 s{S_T3}, s{S_T3}, s{S_W}",
           f"s_lshl_b32 s{S_T3}, s{S_T3}, 3", f"s_add_u32 s{S_T3}, s{S_T3}, {STAT_OFF - SYNC_OFF}", f"v_mov_b32 v{t+5}, s{S_T3}"))
        a(f"v_mov_b32 v{t+6}, {HUGE:#x}")
        a((f"v_cmp_eq_u32 vcc, 63, v{t+4}", f"v_cndmask_b32 v{t+5}, v{t+6}, v{t+5}, vcc"))
        a(f"buffer_store_dwordx2 {vr(t+2,2)}, v{t+5}, {sr(SRD_WS2,4)}, 0 offen sc1")
        return o
    def c_job1():
        o = []; a = o.append
        for j in range(4):
            for i in range(4):
                b = CA if j == 0 else CA + 8
                a(f"v_lshlrev_b32 v{b+2*i}, 16, v{CD+4*j+i}"); a(f"v_and_b32 v{b+2*i+1}, 0xffff0000, v{CD+4*j+i}")
            if j:
                for i in range(8): a(f"v_add_f32 v{CA+i}, v{CA+i}, v{CA+8+i}")
        t = CA + 8
        a(f"v_and_b32 v{t}, 63, v{VTID}")
        a(f"v_bfe_u32 v{t+1}, v{t}, 2, 3"); a(f"v_lshlrev_b32 v{t+1}, 3, v{t+1}")
        a(f"v_bfe_u32 v{t+2}, v{t}, 5, 1"); a(f"v_lshl_add_u32 v{t+1}, v{t+2}, 2, v{t+1}")
        a(f"v_and_b32 v{t+2}, 3, v{t}"); a(f"v_add_u32 v{t+1}, v{t+1}, v{t+2}")
        a((f"s_and_b32 s{S_T3}, s{S_W}, 6", f"s_cmp_eq_u32 s{S_T3}, 4", f"s_cselect_b32 s{S_T3}, 1, 0", f"v_mov_b32 v{t+2}, s{S_T3}"))
        a((f"v_cmp_eq_u32 vcc, 1, v{t+2}", f"v_cndmask_b32 v{t}, v{t}, v{t+1}, vcc"))
        a(f"v_lshlrev_b32 v{t}, 5, v{t}")
        a((f"s_lshl_b32 s{S_T3}, s{S_W}, 11", f"s_add_u32 s{S_T3}, s{S_T3}, {MISC}", f"v_add_u32 v{t}, s{S_T3}, v{t}"))
        a(f"ds_write_b128 v{t}, {vr(CA,4)}"); a(f"ds_write_b128 v{t}, {vr(CA+4,4)} offset:16")
        return o
    def c_job2():
        o = []; a = o.append
        t = CA
        a(f"v_and_b32 v{t+1}, 63, v{VTID}")
        a(f"v_and_b32 v{t+2}, 7, v{t+1}"); a(f"v_lshlrev_b32 v{t+2}, 2, v{t+2}")
        a(f"v_lshrrev_b32 v{t+3}, 3, v{t+1}")
        a(f"v_lshl_add_u32 v{t+6}, v{t+3}, 5, v{t+2}")
        a((f"s_lshl_b32 s{S_T3}, s{S_W}, 11", f"s_add_u32 s{S_T3}, s{S_T3}, {MISC}", f"v_add_u32 v{t+4}, s{S_T3}, v{t+6}"))
        a(f"v_add_u32 v{t+5}, {MISC + 6*2048:#x}, v{t+6}")
        a(f"v_and_b32 v{t+6}, 3, v{t+3}"); a(f"v_lshl_add_u32 v{t+6}, v{t+6}, 5, v{t+2}")
        a(f"v_lshrrev_b32 v{t+3}, 2, v{t+3}")
        a(f"v_lshl_add_u32 v{t+6}, v{t+3}, 11, v{t+6}"); a(f"v_add_u32 v{t+6}, {MISC + 4*2048:#x}, v{t+6}"); a(f"v_add_u32 v{t+7}, 128, v{t+6}")
        a(f"v_mov_b32 v{t+3}, s{S_W}")
        a((f"v_cmp_eq_u32 vcc, 4, v{t+3}", f"v_cndmask_b32 v{t+4}, v{t+4}, v{t+6}, vcc", f"v_cndmask_b32 v{t+5}, v{t+5}, v{t+7}, vcc"))
        for r in range(8): a(f"ds_read_b32 v{CF+r}, v{t+4} offset:{r*256}")
        for r in range(8): a(f"ds_read_b32 v{CF+8+r}, v{t+5} offset:{r*256}")
        a(f"v_lshlrev_b32 v{t}, 2, v{VTID}"); a(f"v_mov_b32 v{t+1}, {HUGE:#x}")
        a((f"v_cmp_gt_u32 vcc, 320, v{VTID}", f"v_cndmask_b32 v{t}, v{t+1}, v{t}, vcc"))
        for r in range(1, 16): a(f"v_add_f32 v{CF}, v{CF}, v{CF+r}")
        a((f"s_lshl_b32 s{S_T3}, s{S_CB}, 4", f"s_add_u32 s{S_T3}, s{S_T3}, s{S_RB}", f"s_mul_i32 s{S_T3}, s{S_T3}, 1280",
           f"s_add_u32 s{S_T3}, s{S_T3}, {CSP_OFF - SYNC_OFF}", f"buffer_store_dword v{CF}, v{t}, {sr(SRD_WS2,4)}, s{S_T3} offen sc1"))
        return o

    def setup_dma(kind, stride):
        out = []; a = out.append
        Lr, t2, t3 = SU0, SU0 + 1, SU0 + 2
        a(f"v_and_b32 v{Lr}, 63, v{VTID}")
        if kind in ("full", "q", "kv"):
            a(f"v_lshrrev_b32 v{t2}, 3, v{Lr}")
            a(f"v_mul_u32_u24 v{VDM0}, {stride}, v{t2}")
            a(f"v_and_b32 v{t2}, 7, v{Lr}")
            a(f"v_bfe_u32 v{t3}, v{Lr}, 4, 1")
            a(f"v_lshlrev_b32 v{t3}, {1 if kind == 'full' else 2}, v{t3}")
            a(f"v_xor_b32 v{t2}, v{t2}, v{t3}")
            a(f"v_lshl_add_u32 v{VDM0}, v{t2}, 4, v{VDM0}")
            if kind == "full": a(f"v_xor_b32 v{VDM1}, 64, v{VDM0}")
            else: a(f"v_mov_b32 v{VDM1}, v{VDM0}")
        else:
            a(f"v_lshrrev_b32 v{t2}, 2, v{Lr}")
            a(f"v_mul_u32_u24 v{VDM0}, {stride}, v{t2}")
            a(f"v_and_b32 v{t2}, 3, v{Lr}")
            a(f"v_lshl_add_u32 v{VDM0}, v{t2}, 4, v{VDM0}")
            a(f"v_xor_b32 v{VDM1}, 32, v{VDM0}")
        return out
    def setup_afrag(kind, win_bytes):
        out = []; a = out.append
        Lr, t2, t3 = SU0, SU0 + 1, SU0 + 2
        a(f"v_and_b32 v{Lr}, 63, v{VTID}")
        a(f"v_lshrrev_b32 v{t2}, 5, v{Lr}"); a(f"v_lshlrev_b32 v{t2}, 3, v{t2}")
        a(f"v_bfe_u32 v{t3}, v{Lr}, 2, 2"); a(f"v_add_u32 v{t2}, v{t2}, v{t3}")
        a(f"v_lshlrev_b32 v{VA0}, {6 if kind == 'half' else 7}, v{t2}")
        a(f"v_bfe_u32 v{t2}, v{Lr}, 1, 1"); a(f"v_bfe_u32 v{t3}, v{Lr}, 4, 1")
        if kind == "full":
            a(f"s_lshl_b32 s{S_T}, s{S_CH}, 2"); a(f"v_add_u32 v{t2}, s{S_T}, v{t2}")
            a(f"v_lshl_add_u32 v{VA0}, v{t3}, 13, v{VA0}")
            a(f"v_lshlrev_b32 v{t3}, 2, v{t3}"); a(f"v_xor_b32 v{t2}, v{t2}, v{t3}")
            a(f"v_bfe_u32 v{t3}, v{Lr}, 3, 1"); a(f"v_lshlrev_b32 v{t3}, 1, v{t3}"); a(f"v_xor_b32 v{t2}, v{t2}, v{t3}")
        elif kind in ("q", "kv"):
            a(f"s_lshl_b32 s{S_T}, s{S_CH}, 2"); a(f"v_add_u32 v{t2}, s{S_T}, v{t2}")
            a(f"v_lshl_add_u32 v{t2}, v{t3}, 1, v{t2}")
            a(f"v_bfe_u32 v{t3}, v{Lr}, 3, 1"); a(f"v_lshlrev_b32 v{t3}, 2, v{t3}"); a(f"v_xor_b32 v{t2}, v{t2}, v{t3}")
        else:
            a(f"s_lshl_b32 s{S_T}, s{S_CH}, 1"); a(f"v_add_u32 v{t2}, s{S_T}, v{t2}")
            a(f"v_lshl_add_u32 v{VA0}, v{t3}, 13, v{VA0}")
            a(f"v_lshlrev_b32 v{t3}, 1, v{t3}"); a(f"v_xor_b32 v{t2}, v{t2}, v{t3}")
        a(f"v_lshl_add_u32 v{VA0}, v{t2}, 4, v{VA0}")
        a(f"v_and_b32 v{t2}, 1, v{Lr}"); a(f"v_lshl_add_u32 v{VA0}, v{t2}, 3, v{VA0}")
        if win_bytes: a(f"v_add_u32 v{VA0}, {win_bytes:#x}, v{VA0}")
        if kind == "full": a(f"v_xor_b32 v{VA1}, 32, v{VA0}")
        if kind == "kv": a(f"v_add_u32 v{VA1}, 0x2000, v{VA0}")
        return out

    def ffn_epi(a, kimm, g_off, u_off, tb):
        out = []; o = out.append
        CS, T8, AD = tb, tb + 8, tb + 16
        o(f"v_bfe_u32 v{AD}, v{VTID}, 5, 1"); o(f"v_lshlrev_b32 v{AD}, 4, v{AD}"); o(f"v_add_u32 v{AD}, s{S_CCS}, v{AD}")
        o(f"ds_read_b128 {vr(CS,4)}, v{AD} offset:{g_off}"); o(f"ds_read_b128 {vr(CS+4,4)}, v{AD} offset:{g_off + 32}")
        o(f"ds_read_b128 {vr(T8,4)}, v{AD} offset:{u_off}"); o(f"ds_read_b128 {vr(T8+4,4)}, v{AD} offset:{u_off + 32}")
        for i in range(8): o(f"v_fma_f32 v{a+i}, v{NEGM}, v{CS+i}, v{a+i}")
        for i in range(8): o(f"v_fma_f32 v{a+8+i}, v{NEGM}, v{T8+i}, v{a+8+i}")
        for i in range(8): o(f"v_mul_f32 v{T8+i}, v{a+i}, v{a+i}")
        for i in range(8): o(f"v_fma_f32 v{T8+i}, v{T8+i}, v{C1P}, v{C0P}")
        for i in range(8): o(f"v_mul_f32 v{T8+i}, v{T8+i}, v{a+i}")
        for i in range(8): o(f"v_exp_f32 v{T8+i}, v{T8+i}")
        for i in range(8): o(f"v_mul_f32 v{a+i}, v{a+i}, v{a+8+i}")
        for i in range(8): o(f"v_fma_f32 v{T8+i}, v{T8+i}, v{IRS2}, v{IRS2}")
        for i in range(8): o(f"v_rcp_f32 v{T8+i}, v{T8+i}")
        for i in range(8): o(f"v_mul_f32 v{a+i}, v{a+i}, v{T8+i}")
        for i in range(4): o(f"v_cvt_pk_bf16_f32 v{CS+i}, v{a+2*i}, v{a+2*i+1}")
        o((f"s_add_u32 s{S_T2}, s{S_KIDX}, {kimm*1024}", f"buffer_store_dwordx4 {vr(CS,4)}, v{VL16}, {sr(SRD_ACT,4)}, s{S_T2} offen sc1"))
        return out

    def kv_epi(ak, av, tb):
        out = []; o = out.append
        ST, PH = tb, tb + 16
        CK, CV, AD = tb + 20, tb + 21, tb + 22
        o(f"v_and_b32 v{AD}, 31, v{VTID}"); o(f"v_lshlrev_b32 v{AD}, 2, v{AD}"); o(f"v_add_u32 v{AD}, s{S_CCS}, v{AD}")
        o(f"ds_read_b32 v{CK}, v{AD}"); o(f"ds_read_b32 v{CV}, v{AD} offset:256")
        o(f"v_bfe_u32 v{AD}, v{VTID}, 5, 1"); o(f"v_lshlrev_b32 v{AD}, 4, v{AD}")
        o((f"s_lshl_b32 s{S_T2}, s{S_TG}, 7", f"v_add_u32 v{AD}, s{S_T2}, v{AD}")); o(f"v_add_u32 v{AD}, {L_RS:#x}, v{AD}")
        def rd(j):
            b = ST + 8 * (j & 1)
            return [f"ds_read_b128 {vr(b,4)}, v{AD} offset:{j*32}", f"ds_read_b128 {vr(b+4,4)}, v{AD} offset:{j*32 + (L_NMR - L_RS)}"]
        out += rd(0) + rd(1)
        for j in range(4):
            b = ST + 8 * (j & 1)
            for i in range(4): o(f"v_mul_f32 v{PH+i}, v{b+4+i}, v{CK}")
            for i in range(4): o(f"v_fma_f32 v{ak+4*j+i}, v{ak+4*j+i}, v{b+i}, v{PH+i}")
            for i in range(4): o(f"v_mul_f32 v{PH+i}, v{b+4+i}, v{CV}")
            for i in range(4): o(f"v_fma_f32 v{av+4*j+i}, v{av+4*j+i}, v{b+i}, v{PH+i}")
            if j + 2 < 4: out += rd(j + 2)
        P8 = ST
        for half in range(2):
            aa = ak + 8 * half
            for i in range(8): o(f"v_mul_f32 v{P8+i}, s{S_L2E}, v{aa+i}")
            for i in range(8): o(f"v_min_f32 v{P8+i}, 0, v{P8+i}")
            for i in range(8): o(f"v_exp_f32 v{P8+i}, v{P8+i}")
            for i in range(8): o(f"v_max_f32 v{aa+i}, 0, v{aa+i}")
            for i in range(8): o(f"v_add_f32 v{P8+i}, s{S_EPS6}, v{P8+i}")
            for i in range(8): o(f"v_add_f32 v{aa+i}, v{aa+i}, v{P8+i}")
        Z = PH
        o(f"v_add_f32 v{Z}, v{ak}, v{ak+1}"); o(f"v_add_f32 v{Z+1}, v{ak+2}, v{ak+3}")
        for i in range(4, 16, 2):
            o(f"v_add_f32 v{Z}, v{Z}, v{ak+i}"); o(f"v_add_f32 v{Z+1}, v{Z+1}, v{ak+i+1}")
        o(f"v_add_f32 v{Z}, v{Z}, v{Z+1}")
        for r in range(8): o(f"v_cvt_pk_bf16_f32 v{ak+r}, v{ak+2*r}, v{ak+2*r+1}")
        for r in range(8): o(f"v_cvt_pk_bf16_f32 v{av+r}, v{av+2*r}, v{av+2*r+1}")
        R = ST
        o(f"v_mfma_f32_32x32x16_bf16 {vr(R,16)}, {vr(ak,4)}, {vr(av,4)}, 0")
        o(f"v_mfma_f32_32x32x16_bf16 {vr(R,16)}, {vr(ak+4,4)}, {vr(av+4,4)}, {vr(R,16)}")
        o(f"v_and_b32 v{AD}, 63, v{VTID}")
        o(f"v_lshlrev_b32 v{CK}, 2, v{AD}"); o(f"v_lshlrev_b32 v{AD}, 5, v{AD}")
        o((f"s_lshl_b32 s{S_T2}, s{S_TG}, 1", f"s_add_u32 s{S_T2}, s{S_T2}, s{S_CH}", f"s_mul_i32 s{S_T2}, s{S_T2}, 2304", f"s_add_u32 s{S_T2}, s{S_T2}, {KVP}",
           f"v_add_u32 v{CK}, s{S_T2}, v{CK}", f"v_add_u32 v{AD}, s{S_T2}, v{AD}"))
        o(f"ds_write_b32 v{CK}, v{Z} offset:2048")
        o((f"s_mov_b32 s{S_KM}, 0xffff0000", f"s_mov_b32 s{S_KM+1}, 0xffff0000"))
        for i in range(8): o(f"v_cndmask_b32 v{R+i}, v{R+i}, v{R+8+i}, {sr(S_KM,2)}")
        o(f"ds_write_b128 v{AD}, {vr(R,4)}"); o(f"ds_write_b128 v{AD}, {vr(R+4,4)} offset:16")
        return out

    kvz = {}
    def kv_publish1():
        p.wait(lgkm=0); p.barrier()
        t = VT
        e(f"v_bfe_u32 v{t}, v{VTID}, 2, 5")
        e(f"v_and_b32 v{t+1}, 1, v{VTID}")
        e(f"v_lshl_add_u32 v{t}, v{t+1}, 5, v{t}")
        e(f"v_lshlrev_b32 v{t}, 5, v{t}")
        e(f"v_bfe_u32 v{t+1}, v{VTID}, 1, 1"); e(f"v_lshl_add_u32 v{t}, v{t+1}, 4, v{t}")
        e(f"v_bfe_u32 v{t+1}, v{VTID}, 7, 1"); e(f"v_mul_u32_u24 v{t+1}, 2304, v{t+1}"); e(f"v_add_u32 v{t}, v{t}, v{t+1}")
        e(f"v_and_b32 v{t+1}, 7, v{VTID}"); e(f"v_lshlrev_b32 v{t+1}, 4, v{t+1}")
        e(f"v_bfe_u32 v{t+2}, v{VTID}, 3, 1"); e(f"v_mul_u32_u24 v{t+2}, 2304, v{t+2}"); e(f"v_add_u32 v{t+1}, v{t+1}, v{t+2}")
        e(f"v_add_u32 v{t+1}, 2048, v{t+1}")
        e(f"v_cmp_gt_u32 vcc, 256, v{VTID}")
        e(f"v_cndmask_b32 v{t}, v{t+1}, v{t}, vcc")
        e(f"v_add_u32 v{t}, {KVP:#x}, v{t}")
        e(f"v_mov_b32 v{t+2}, 1.0"); e(f"v_mov_b32 v{t+3}, 0")
        e(f"v_cndmask_b32 v{t+2}, v{t+2}, v{t+3}, vcc")
        D = 128
        for g in range(4):
            e(f"ds_read_b128 {vr(D+4*g,4)}, v{t} offset:{g*2*2304}")
            e(f"ds_read_b128 {vr(D+16+4*g,4)}, v{t} offset:{g*2*2304 + 128}")
        e(f"v_lshlrev_b32 v{t+4}, 4, v{VTID}"); e(f"v_mov_b32 v{t+5}, {HUGE:#x}")
        e(f"v_cmp_gt_u32 vcc, 272, v{VTID}"); e(f"v_cndmask_b32 v{t+4}, v{t+5}, v{t+4}, vcc")
        for base in (D, D + 16):
            for i in range(4):
                e(f"v_add_f32 v{base+i}, v{base+i}, v{base+4+i}"); e(f"v_add_f32 v{base+8+i}, v{base+8+i}, v{base+12+i}")
            for i in range(4): e(f"v_add_f32 v{base+i}, v{base+i}, v{base+8+i}")
        for i in range(4): e(f"v_fma_f32 v{D+i}, v{D+16+i}, v{t+2}, v{D+i}")
        e(f"s_mul_i32 s{S_T}, s{S_RB}, {TP}")
        e(f"buffer_store_dwordx4 {vr(D,4)}, v{t+4}, {sr(SRD_T,4)}, s{S_T} offen sc1")
        kvz["tok"] = p.last_vm()

    qz = {}
    PQ = 244
    def q_pre(a):
        t = VT
        e(f"v_bfe_u32 v{t}, v{VTID}, 5, 1")
        e(f"v_lshlrev_b32 v{t+2}, 4, v{t}")
        e(f"s_lshl_b32 s{S_T2}, s{S_CH}, 7"); e(f"s_add_u32 s{S_T2}, s{S_T2}, {L_CS + 1024}")
        e(f"v_add_u32 v{t+2}, s{S_T2}, v{t+2}")
        CSQ = 160
        for j in range(4): e(f"ds_read_b128 {vr(CSQ + 4*j, 4)}, v{t+2} offset:{32*j}")
        for i in range(16): e(f"v_fma_f32 v{a+i}, v{NEGM}, v{CSQ+i}, v{a+i}")
        for i in range(16): e(f"v_mul_f32 v{a+i}, v{RSTD}, v{a+i}")
        for half in range(2):
            aa = a + 8 * half
            for i in range(8): e(f"v_mul_f32 v{t+i}, s{S_L2E}, v{aa+i}")
            for i in range(8): e(f"v_min_f32 v{t+i}, 0, v{t+i}")
            for i in range(8): e(f"v_exp_f32 v{t+i}, v{t+i}")
            for i in range(8): e(f"v_max_f32 v{aa+i}, 0, v{aa+i}")
            for i in range(8): e(f"v_add_f32 v{t+i}, s{S_EPS6}, v{t+i}")
            for i in range(8): e(f"v_add_f32 v{aa+i}, v{aa+i}, v{t+i}")
        for i in range(8): e(f"v_cvt_pk_bf16_f32 v{PQ+i}, v{a+2*i}, v{a+2*i+1}")
    def q_gather(G0, t):
        e(f"v_lshlrev_b32 v{t}, 4, v{VTID}"); e(f"v_mov_b32 v{t+1}, {HUGE:#x}")
        e(f"v_cmp_gt_u32 vcc, 272, v{VTID}"); e(f"v_cndmask_b32 v{t}, v{t+1}, v{t}, vcc")
        e(f"s_mov_b32 s{S_T3}, 0")
        for r in range(16):
            e(f"buffer_load_dwordx4 {vr(G0+4*r,4)}, v{t}, {sr(SRD_T,4)}, s{S_T3} offen sc1")
            if r < 15: e(f"s_add_u32 s{S_T3}, s{S_T3}, {TP}")
        for step in (1, 2, 4, 8):
            for r in range(0, 16, 2*step):
                for i in range(4): e(f"v_add_f32 v{G0+4*r+i}, v{G0+4*r+i}, v{G0+4*(r+step)+i}")
        e(f"v_lshlrev_b32 v{t}, 4, v{VTID}"); e(f"v_add_u32 v{t}, {L_T:#x}, v{t}")
        e(f"v_cmp_gt_u32 vcc, 272, v{VTID}")
        e(f"s_and_saveexec_b64 {sr(S_EX,2)}, vcc")
        e(f"ds_write_b128 v{t}, {vr(G0,4)}")
        e(f"s_mov_b64 exec, {sr(S_EX,2)}")
        p.wait(lgkm=0); p.barrier()
    def q_load(TL, t):
        e(f"v_and_b32 v{t}, 63, v{VTID}"); e(f"v_and_b32 v{t+1}, 31, v{t}"); e(f"v_lshrrev_b32 v{t}, 5, v{t}")
        e(f"v_lshlrev_b32 v{t+3}, 6, v{t+1}"); e(f"s_lshl_b32 s{S_T}, s{S_CH}, 11"); e(f"v_add_u32 v{t+3}, s{S_T}, v{t+3}")
        e(f"s_lshl_b32 s{S_T}, s{S_CH}, 7"); e(f"s_add_u32 s{S_T}, s{S_T}, 4096"); e(f"v_mov_b32 v{t+4}, s{S_T}")
        e(f"v_mov_b32 v{t+5}, 1024"); e(f"v_mov_b32 v{t+6}, 64")
        e(f"v_cmp_gt_u32 vcc, 16, v{t+1}")
        e(f"v_cndmask_b32 v{t+3}, v{t+4}, v{t+3}, vcc"); e(f"v_cndmask_b32 v{t+5}, v{t+6}, v{t+5}, vcc")
        e(f"v_lshl_add_u32 v{t+3}, v{t}, 4, v{t+3}")
        e(f"v_add_u32 v{t+3}, {L_T:#x}, v{t+3}")
        e(f"v_add_u32 v{t+4}, v{t+3}, v{t+5}")
        for hs in range(2):
            e(f"ds_read_b128 {vr(TL + 8*hs, 4)}, v{t+3+hs}")
            e(f"ds_read_b128 {vr(TL + 8*hs + 4, 4)}, v{t+3+hs} offset:32")
    def q_mma(TL, AH, D):
        for hs in range(2):
            for i in range(4): e(f"v_cvt_pk_bf16_f32 v{AH + 4*hs + i}, v{TL + 8*hs + 2*i}, v{TL + 8*hs + 2*i + 1}")
        for hs in range(2):
            e(f"v_mfma_f32_32x32x16_bf16 {vr(D[hs],16)}, {vr(AH + 4*hs, 4)}, {vr(PQ + 4*hs, 4)}, 0")
    def q_fin(D, srd):
        e(f"s_lshl_b32 s{S_KIDX}, s{S_AB}, 2"); e(f"s_lshl_b32 s{S_T2}, s{S_CH}, 1")
        e(f"s_add_u32 s{S_KIDX}, s{S_KIDX}, s{S_T2}"); e(f"s_add_u32 s{S_KIDX}, s{S_KIDX}, 112")
        e(f"s_lshl_b32 s{S_KIDX}, s{S_KIDX}, 10")
        for hs in range(2):
            d = D[hs]
            e(f"v_add_f32 v{d+8}, s{S_EPS6}, v{d+8}")
            e(f"v_rcp_f32 v{d+8}, v{d+8}")
            for i in range(8): e(f"v_mul_f32 v{d+i}, v{d+i}, v{d+8}")
            for i in range(4): e(f"v_cvt_pk_bf16_f32 v{d+12+i}, v{d+2*i}, v{d+2*i+1}")
            e(f"buffer_store_dwordx4 {vr(d+12,4)}, v{VL16}, {sr(srd,4)}, s{S_KIDX} offen offset:{hs*1024} sc1")
        qz["tok"] = p.last_vm()

    def p2_setup():
        Lr, t2, t3 = SU0, SU0 + 1, SU0 + 2
        e(f"v_and_b32 v{Lr}, 63, v{VTID}")
        e(f"v_lshrrev_b32 v{t2}, 3, v{Lr}"); e(f"v_lshlrev_b32 v{VDMA2}, 10, v{t2}")
        e(f"v_and_b32 v{t2}, 7, v{Lr}"); e(f"v_bfe_u32 v{t3}, v{Lr}, 4, 1"); e(f"v_lshlrev_b32 v{t3}, 2, v{t3}")
        e(f"v_xor_b32 v{t2}, v{t2}, v{t3}"); e(f"v_lshl_add_u32 v{VDMA2}, v{t2}, 4, v{VDMA2}")
        e(f"s_lshl_b32 s{S_T}, s{S_CB2}, 7"); e(f"v_add_u32 v{VDMA2}, s{S_T}, v{VDMA2}")
        set_srd(SRD_WA, S_WD, 1792 * 1024)
        set_srd(SRD_WB, S_WO, 512 * 1024)
        e(f"s_mul_i32 s{S_OA}, s{S_R2}, 28"); e(f"s_add_u32 s{S_OA}, s{S_OA}, s{S_TH2}"); e(f"s_lshl_b32 s{S_OA}, s{S_OA}, 14")
        e(f"s_lshl_b32 s{S_OB}, s{S_R2}, 3"); e(f"s_add_u32 s{S_OB}, s{S_OB}, s{S_TH2}"); e(f"s_lshl_b32 s{S_OB}, s{S_OB}, 14")
        e(f"s_lshl_b32 s{S_M0B2}, s{S_R2}, 12"); e(f"s_lshl_b32 s{S_T}, s{S_TH2}, 11"); e(f"s_add_u32 s{S_M0B2}, s{S_M0B2}, s{S_T}")

    def run_type(isA):
        tag = "A" if isA else "B"
        kinds = ["full", "full", "q"] if isA else ["kv", "full", "half"]
        strides = [3584, 3584, 3072] if isA else [3072, 3584, 3584]
        stages = []
        for ps in range(3):
            for ls in range(4 if ps == 2 else 8): stages.append((kinds[ps], ps, ls))
        N1, N2 = len(stages), 18
        dma_tok, slot_of = {}, {}
        cur_pass = [-1]
        dq = []
        defer = [False]
        def E(x):
            if defer[0]: dq.append(x if isinstance(x, tuple) else (x,))
            else:
                for y in (x if isinstance(x, tuple) else (x,)): e(y)
        def TOK(key):
            if defer[0]: dq.append(("TOK", key))
            else: dma_tok[key] = p.last_vm()
        def capture(fn):
            if not defer[0]:
                fn(); return
            n0 = len(p.ins); sv = (list(p.lgkm), list(p.vm), p.vm_count)
            fn()
            got = [i.text for i in p.ins[n0:]]
            del p.ins[n0:]
            p.lgkm, p.vm, p.vm_count = sv
            dq.append(tuple(got))
        def drain_dq(n=999):
            while dq and n > 0:
                x = dq.pop(0)
                if x[0] == "TOK": dma_tok[x[1]] = p.last_vm(); continue
                for y in x:
                    if "nodma" in cfg.dbg and "buffer_load" in y: continue
                    e(y)
                if any("buffer_load" in y for y in x): n -= 1
            while dq and dq[0][0] == "TOK":
                dma_tok[dq.pop(0)[1]] = p.last_vm()
        def setup_dma_pass(ps):
            kd = kinds[ps]
            for x in setup_dma(kd, strides[ps]): e(x)
            if isA:
                if ps < 2:
                    set_srd(SRD_M0, S_WG, 512*3584); set_srd(SRD_M1, S_WU, 512*3584)
                    e(f"s_lshl_b32 s{S_COL0}, s{S_AB}, 8")
                    if ps: e(f"s_add_u32 s{S_COL0}, s{S_COL0}, 128")
                    e(f"s_mov_b32 s{S_COL1}, s{S_COL0}")
                else:
                    set_srd(SRD_M0, S_WQKV, 512*3072); set_srd(SRD_M1, S_WQKV, 512*3072)
                    e(f"s_lshl_b32 s{S_COL0}, s{S_AB}, 7"); e(f"s_add_u32 s{S_COL1}, s{S_COL0}, {64*3072}")
            else:
                if ps == 0:
                    set_srd(SRD_M0, S_WQKV, 512*3072); set_srd(SRD_M1, S_WQKV, 512*3072)
                    e(f"s_lshl_b32 s{S_COL0}, s{S_AB}, 7")
                    e(f"s_add_u32 s{S_COL1}, s{S_COL0}, 2048"); e(f"s_add_u32 s{S_COL0}, s{S_COL0}, 1024")
                else:
                    set_srd(SRD_M0, S_WG, 512*3584); set_srd(SRD_M1, S_WU, 512*3584)
                    if ps == 1:
                        e(f"s_lshl_b32 s{S_COL0}, s{S_AB}, 7"); e(f"s_add_u32 s{S_COL0}, s{S_COL0}, {16*128}")
                    else:
                        e(f"s_lshr_b32 s{S_COL0}, s{S_AB}, 1"); e(f"s_lshl_b32 s{S_COL0}, s{S_COL0}, 7")
                        e(f"s_and_b32 s{S_T}, s{S_AB}, 1"); e(f"s_lshl_b32 s{S_T}, s{S_T}, 6")
                        e(f"s_add_u32 s{S_COL0}, s{S_COL0}, s{S_T}"); e(f"s_add_u32 s{S_COL0}, s{S_COL0}, {24*128}")
                    e(f"s_mov_b32 s{S_COL1}, s{S_COL0}")
            if "hot" in cfg.dbg:
                e(f"s_and_b32 s{S_COL0}, s{S_COL0}, 0"); e(f"s_and_b32 s{S_COL1}, s{S_COL1}, 0")
            rows = 16 if kd == "half" else 8
            e(f"s_mul_i32 s{S_T}, s{S_W}, {rows*strides[ps]}")
            e(f"s_add_u32 s{S_COL0}, s{S_COL0}, s{S_T}"); e(f"s_add_u32 s{S_COL1}, s{S_COL1}, s{S_T}")
            e(f"s_lshl_b32 s{S_M0B}, s{S_W}, 10")
        p2s = [False]
        def issue_w(s, slot):
            slot_of[("W", s)] = slot
            if s < N1:
                kd, ps, ls = stages[s]
                if ps != cur_pass[0]:
                    capture(lambda: setup_dma_pass(ps)); cur_pass[0] = ps
                rows = 128 if ps == 2 else 64
                for j, (srd, col, vd) in enumerate(((SRD_M0, S_COL0, VDM0), (SRD_M1, S_COL1, VDM1))):
                    E((f"s_add_u32 s{S_T}, s{col}, {ls * rows * strides[ps]}",
                       f"s_add_u32 m0, s{S_M0B}, {slot*16384 + j*8192}",
                       f"buffer_load_dwordx4 v{vd}, {sr(srd,4)}, s{S_T} offen lds"))
            else:
                if not p2s[0]:
                    capture(p2_setup); p2s[0] = True
                st = s - N1
                srd, so, st_ = (SRD_WA, S_OA, st) if st < 14 else (SRD_WB, S_OB, st - 14)
                for j in range(2):
                    E((f"s_add_u32 s{S_T}, s{so}, {st_ * 32768 + j * 8192}",
                       f"s_add_u32 m0, s{S_M0B2}, {slot * 16384 + j * 1024}",
                       f"buffer_load_dwordx4 v{VDMA2}, {sr(srd,4)}, s{S_T} offen lds"))
            TOK(("W", s))
        def issue_x(c, slot):
            slot_of[("X", c)] = slot
            for j in range(4):
                E((f"s_lshl_b32 s{S_T}, s{S_W}, 14", f"s_add_u32 s{S_T}, s{S_T}, {j*4096 + c*256}",
                   f"s_lshl_b32 m0, s{S_W}, 12", f"s_add_u32 m0, m0, {slot*16384 + j*1024}",
                   f"buffer_load_dwordx4 v{XV+j}, {sr(SRD_X,4)}, s{S_T} offen lds"))
            TOK(("X", c))
        Q1 = [(("X", 0), -1), (("W", 0), -1), (("W", 1), 0), (("X", 1), 1), (("W", 2), 1), (("W", 3), 2), (("X", 2), 3), (("W", 4), 3),
              (("W", 5), 4), (("X", 3), 5), (("W", 6), 5), (("W", 7), 6)]
        Q1 += [(("W", q), q - 1 if q <= 8 else ((q - 1) // 2) * 2) for q in range(8, N1)]
        Q2 = [("W", q) for q in range(N1, N1 + N2)]
        free = set(range(9)); sched_log = []
        LA = cfg.LA
        def allowed(item, slot, now):
            if slot in (7, 8) and not isA:
                q = item[1]
                if 9 <= q < N1: return False
                if q >= N1 and now < cfg.KVPUB + 2: return False
            return True
        def place(it, now):
            if it[0] == "X":
                c = [a for a in (0, 2, 4, 6) if a in free and a + 1 in free]
                if not c: return False
                free.discard(c[0]); free.discard(c[0] + 1); issue_x(it[1], c[0])
            else:
                c = [a for a in sorted(free) if allowed(it, a, now)]
                if any(o[0][0] == "X" for o in Q1):
                    c2 = [a for a in c if a == 8 or (a ^ 1) not in free]
                    c = c2 or c
                if not c: return False
                free.discard(c[0]); issue_w(it[1], c[0])
            sched_log.append((now, it[0] + str(it[1]), slot_of[it]))
            return True
        def pump(now, limit=99, q2=0):
            n = 0
            while Q1 and n < limit and Q1[0][1] <= now + LA:
                if not place(Q1[0][0], now): break
                Q1.pop(0); n += 1
            while Q2 and q2 > 0:
                reserve = sum(2 if o[0][0] == "X" else 1 for o in Q1 if o[1] <= now + LA + 2)
                if len(free) - 1 < reserve: break
                if not place(Q2[0], now): break
                Q2.pop(0); q2 -= 1
        zero_stores(isA)
        pump(0 - LA, limit=3)
        raw("s_barrier")
        if cfg.touch:
            touch_w(isA, [0, 1], 128, 48, C0P, SRD_WB, VT + 8)
            touch_x([2, 3], 2, C1P, VT + 8)
        pump(1 - LA, limit=1)
        stamp(3, True)
        e(f"v_and_b32 v{XA+1}, 31, v{VTID}"); e(f"v_bfe_u32 v{XA+2}, v{VTID}, 5, 1")
        e(f"v_and_b32 v{XA}, 15, v{XA+1}"); e(f"v_xor_b32 v{XA+2}, v{XA}, v{XA+2}")
        e(f"s_lshl_b32 s{S_T}, s{S_TG}, 5"); e(f"v_add_u32 v{XA+1}, s{S_T}, v{XA+1}")
        e(f"v_lshlrev_b32 v{XA}, 8, v{XA+1}"); e(f"v_lshl_add_u32 v{XA}, v{XA+2}, 4, v{XA}")
        def read_x(c):
            base = slot_of[("X", c)] * 16384
            win = (base // 65536) * 65536
            assert base - win <= 32768
            out = []
            for kk in range(8):
                tt = XA + 1 + (kk & 1)
                g = [f"v_xor_b32 v{tt}, {32*kk}, v{XA}"]
                if win: g.append(f"v_add_u32 v{tt}, {win:#x}, v{tt}")
                g.append(f"ds_read_b128 {vr(XB + 4*(8*c + kk), 4)}, v{tt} offset:{base - win}")
                out.append(tuple(g))
            return out
        for x in setup_afrag(kinds[0], ((slot_of[("W", 0)] * 16384) // 65536) * 65536): e(x)
        stamp(5, True)
        p.wait_vm_tok(max(dma_tok[("X", 0)], dma_tok[("W", 0)]))
        stamp(6, True)
        p.barrier()
        stamp(1)
        n = nid()
        e(f"s_cmp_lg_u32 s2, 0"); e(f"s_cbranch_scc1 L_zfa{n}")
        raw(f"v_mov_b32 v{PA}, 0"); raw(f"v_mov_b32 v{PD}, 1"); raw(f"global_store_dword v{PA}, v{PD}, {sr(S_DBG,2)} sc1"); raw("s_nop 1")
        p.label(f"L_zfa{n}")
        for g in read_x(0):
            for x in g: e(x)

        steps = []
        for s in range(N1):
            kd, ps, ls = stages[s]
            for q in range(4):
                if ps < 2:
                    k = ls * 4 + q
                    steps.append(dict(stage=s, ps=ps, kd=kd, fr=[(VA0, q*2048, 512), (VA1, q*2048, 512)], x=[k, k], tile=[0, 1]))
                elif kd == "q":
                    k = ls * 8 + 2 * q
                    steps.append(dict(stage=s, ps=ps, kd=kd, fr=[(VA0, 2*q*2048, 512), (VA0, (2*q+1)*2048, 512)], x=[k, k+1], tile=[0, 0]))
                else:
                    k = ls * 8 + 2 * q
                    steps.append(dict(stage=s, ps=ps, kd=kd, fr=[(VA0, 2*q*1024, 256), (VA0, (2*q+1)*1024, 256)], x=[k, k+1], tile=[0, 0]))
        state = dict(ps=0, win=(slot_of[("W", 0)] * 16384) // 65536)
        def read_step(i, part=None):
            st = steps[i]
            sl = slot_of[("W", st["stage"])]
            win = (sl * 16384) // 65536
            if st["ps"] != state["ps"]:
                for x in setup_afrag(st["kd"], win * 65536): e(x)
                state["ps"], state["win"] = st["ps"], win
            elif win != state["win"]:
                d = (win - state["win"]) * 65536
                e(f"v_add_u32 v{VA0}, {d & 0xffffffff:#x}, v{VA0}")
                if st["kd"] in ("full", "kv"): e(f"v_add_u32 v{VA1}, {d & 0xffffffff:#x}, v{VA1}")
                state["win"] = win
            base = sl * 16384 - win * 65536
            buf = AF + (i % 3) * 8
            for f, (va, off, sec) in enumerate(st["fr"]):
                if part is not None and f != part: continue
                e(f"ds_read_b64_tr_b16 {vr(buf + 4*f, 2)}, v{va} offset:{base + off}")
                e(f"ds_read_b64_tr_b16 {vr(buf + 4*f + 2, 2)}, v{va} offset:{base + off + sec}")
        started = set()
        def mfma_step(i, only):
            st = steps[i]
            buf = AF + (i % 3) * 8
            accs = ACC[st["ps"] & 1]
            for f in (only,):
                d = accs + 16 * st["tile"][f]
                key = (st["ps"], st["tile"][f])
                c = vr(d, 16) if key in started else "0"
                started.add(key)
                xr = vr(XB + 4 * st["x"][f], 4); ar = vr(buf + 4*f, 4)
                if st["kd"] == "kv": e(f"v_mfma_f32_32x32x16_bf16 {vr(d,16)}, {xr}, {ar}, {c}")
                else: e(f"v_mfma_f32_32x32x16_bf16 {vr(d,16)}, {ar}, {xr}, {c}")
        def epi_list(ps):
            a = ACC[ps & 1]
            ccs = [f"s_lshl_b32 s{S_CCS}, s{S_CH}, 7", f"s_add_u32 s{S_CCS}, s{S_CCS}, {L_CS}"]
            if (not isA) and ps == 0: return ccs + kv_epi(a, a + 16, VT)
            sh, k0, g = (3, 4*ps, 2*ps) if isA else (2, 64, 2)
            pre = [f"s_lshl_b32 s{S_KIDX}, s{S_AB}, {sh}", f"s_lshl_b32 s{S_T2}, s{S_CH}, 1", f"s_add_u32 s{S_KIDX}, s{S_KIDX}, s{S_T2}",
                   f"s_lshl_b32 s{S_KIDX}, s{S_KIDX}, 10"] + ccs
            return pre + ffn_epi(a, k0, g*256, (g+1)*256, VT) + ffn_epi(a + 16, k0 + 1, g*256 + 64, (g+1)*256 + 64, VT)

        read_step(0); read_step(1)
        nsteps = len(steps)
        pend = []; quota = 0.0; credit = 0.0
        extra = []; soft = []; soft_dl = [0]; blocks = []
        side_store_tok = [None]
        def emit_item(x):
            for y in (x if isinstance(x, tuple) else (x,)):
                e(y)
                if y.startswith("buffer_store"): side_store_tok[0] = p.last_vm()
        def nitems(l): return len(l)
        bar_stages = list(range(0, 8)) + [8, 10, 12, 14, 16, 18]
        last_freed = [0]
        side = {}
        POLL0, POLL1 = VT + 24, VT + 25
        POLL0, POLL1 = VT + 12, VT + 13
        def poll_issue(reg, line_expr):
            for x in line_expr: e(x)
            e(f"s_lshl_b32 s{S_T}, s{S_T}, 7"); e(f"v_mov_b32 v{PA}, s{S_T}")
            e(f"buffer_load_dword v{reg}, v{PA}, {sr(SRD_WS2,4)}, 0 offen sc1")
        def poll_check(reg, line_expr, target):
            n = nid()
            e(f"v_readfirstlane_b32 s{S_T}, v{reg}")
            raw("s_nop 3")
            raw(f"s_cmp_ge_u32 s{S_T}, {target}"); raw(f"s_cbranch_scc1 L_pc{n}")
            for x in line_expr: raw(x)
            raw(f"s_lshl_b32 s{S_T}, s{S_T}, 7"); raw(f"v_mov_b32 v{PA}, s{S_T}")
            spin(f"buffer_load_dword v{PD}, v{PA}, {sr(SRD_WS2,4)}, 0 offen sc1", f"s_cmp_ge_u32 s{S_T}, {target}")
            p.label(f"L_pc{n}")
        for i in range(nsteps):
            st = steps[i]; s = st["stage"]
            if i % 4 == 0 and s in bar_stages:
                assert not dq
                nxt_bar = min([b for b in bar_stages if b > s] + [N1])
                need = [dma_tok[("W", q)] for q in range(s + 1, min(nxt_bar, N1 - 1) + 1) if ("W", q) in dma_tok]
                assert all(("W", q) in dma_tok for q in range(s + 1, min(nxt_bar, N1 - 1) + 1)), (tag, s)
                xc = None
                if s in (1, 3, 5): xc = (s + 1) // 2; need.append(dma_tok[("X", xc)])
                if s == 5: need.append(side["tok"])
                if need: p.wait_vm_tok(max(need))
                if s in (0, 2, 3, 4, 6):
                    if s != 0: assert not extra, (tag, s, len(extra))
                    if s == 3: assert not soft
                    p.wait(lgkm=0)
                p.barrier()
                for q in range(last_freed[0], s): free.add(slot_of[("W", q)])
                last_freed[0] = max(last_freed[0], s)
                if s in (0, 2, 4, 6):
                    c = s // 2; free.add(slot_of[("X", c)]); free.add(slot_of[("X", c)] + 1)
                if getattr(cfg, "stages", None) and s in cfg.stages: stamp(1 + cfg.stages.index(s), force=True)
                defer[0] = True
                pump(s, limit=4, q2=(0 if s < 8 else cfg.Q2RATE))
                defer[0] = False
                if s == 0: blocks.append(("side_loads",))
                if s == 1:
                    soft += c_job1() + s_job(); soft_dl[0] = 3 * 4
                if xc is not None and "nox" not in cfg.dbg: extra += read_x(xc)
                if s == 3:
                    soft += c_job2(); soft_dl[0] = 4 * 4
                if s == 2 and cfg.touch: blocks.append(("touch2",))
                if s == 4 and cfg.prefetch: mall_prefetch()
                if s == 9 - 1 and cfg.touch: blocks.append(("touch3",))
                if s == 4:
                    e(f"v_mov_b32 v{ZF+1}, 0")
                    e(f"global_load_dword v{ZF}, v{ZF+1}, {sr(S_DBG,2)} sc1")
                if s == 5:
                    n = nid()
                    e(f"v_readfirstlane_b32 s{S_T}, v{ZF}")
                    raw(f"s_cmp_lg_u32 s{S_W}, 0"); raw(f"s_cbranch_scc1 L_zf{n}")
                    raw(f"s_mov_b32 s{S_SPIN}, 0x40000")
                    p.label(f"L_zfl{n}")
                    raw(f"v_readfirstlane_b32 s{S_T}, v{ZF}"); raw("s_nop 3")
                    raw(f"s_cmp_lg_u32 s{S_T}, 0"); raw(f"s_cbranch_scc1 L_zf{n}")
                    raw(f"global_load_dword v{ZF}, v{ZF+1}, {sr(S_DBG,2)} sc1"); raw("s_waitcnt vmcnt(0)")
                    raw(f"s_sub_u32 s{S_SPIN}, s{S_SPIN}, 1"); raw(f"s_cbranch_scc0 L_zfl{n}")
                    p.label(f"L_zf{n}")
                    cnt_add([f"s_mov_b32 s{S_T}, s{S_RB}"])
                    cnt_add([f"s_add_u32 s{S_T}, s{S_CB}, 16"])
                if s == 7:
                    poll_issue(POLL0, [f"s_mov_b32 s{S_T}, s{S_RB}"])
                    poll_issue(POLL1, [f"s_add_u32 s{S_T}, s{S_CB}, 16"])
                if s == 8:
                    stamp(2)
                    if "noside" not in cfg.dbg:
                        poll_check(POLL0, [f"s_mov_b32 s{S_T}, s{S_RB}"], 16)
                        poll_check(POLL1, [f"s_add_u32 s{S_T}, s{S_CB}, 16"], 16)
                    stamp(3)
                    e(f"v_lshlrev_b32 v{VT+16}, 3, v{VTID}"); e(f"v_mov_b32 v{VT+17}, {HUGE:#x}")
                    e(f"v_cmp_gt_u32 vcc, 128, v{VTID}"); e(f"v_cndmask_b32 v{VT+20}, v{VT+17}, v{VT+16}, vcc")
                    e(f"s_lshl_b32 s{S_T3}, s{S_RB}, 10"); e(f"s_add_u32 s{S_T3}, s{S_T3}, {STAT_OFF - SYNC_OFF}")
                    e(f"buffer_load_dwordx2 {vr(VT+18,2)}, v{VT+20}, {sr(SRD_WS2,4)}, s{S_T3} offen sc1")
                    e(f"v_lshlrev_b32 v{VT+16}, 2, v{VTID}")
                    e(f"v_cmp_gt_u32 vcc, 320, v{VTID}"); e(f"v_cndmask_b32 v{VT+16}, v{VT+17}, v{VT+16}, vcc")
                    e(f"s_mul_i32 s{S_KIDX}, s{S_CB}, {16*1280}"); e(f"s_add_u32 s{S_KIDX}, s{S_KIDX}, {CSP_OFF - SYNC_OFF}")
                    for r in range(16):
                        soft.append((f"s_add_u32 s{S_T3}, s{S_KIDX}, {r*1280}", f"buffer_load_dword v{VT+r}, v{VT+16}, {sr(SRD_WS2,4)}, s{S_T3} offen sc1"))
                    soft_dl[0] = 9 * 4
                if s == 10:
                    e(f"v_and_b32 v{VT}, 31, v{VTID}"); e(f"s_lshl_b32 s{S_T}, s{S_TG}, 5"); e(f"v_add_u32 v{VT}, s{S_T}, v{VT}")
                    e(f"v_lshlrev_b32 v{VT}, 2, v{VT}"); e(f"v_add_u32 v{VT}, {L_RS:#x}, v{VT}")
                    e(f"ds_read_b32 v{RSTD}, v{VT}"); e(f"ds_read_b32 v{NEGM}, v{VT} offset:{L_NM - L_RS}")
                    e(f"v_mul_f32 v{C0P}, s{S_C0}, v{RSTD}")
                    e(f"v_mul_f32 v{IRS2}, v{RSTD}, v{RSTD}")
                    e(f"v_mul_f32 v{C1P}, v{C0P}, v{IRS2}")
                    e(f"v_mul_f32 v{C1P}, {f2u(0.044715):#x}, v{C1P}")
                    e(f"v_rcp_f32 v{IRS2}, v{IRS2}")
                    stamp(4)
                if (not isA) and s == cfg.KVPUB:
                    assert not pend
                    kv_publish1()
                if (not isA) and s == cfg.KVPUB + 2:
                    p.wait_vm_tok(kvz["tok"]); p.barrier()
                    cnt_add([f"s_add_u32 s{S_T}, s{S_AB}, 32"])
                if s == 16: stamp(5)
            if i == 38:
                SP = VT + 18
                for step in (1, 2, 4, 8):
                    for r in range(0, 16, 2*step): e(f"v_add_f32 v{VT+r}, v{VT+r}, v{VT+r+step}")
                e(f"v_lshlrev_b32 v{VT+16}, 2, v{VTID}")
                e(f"v_add_u32 v{VT+17}, {L_CS:#x}, v{VT+16}")
                e(f"v_mul_f32 v{VT+1}, v{SP}, v{SP+1}")
                e(f"v_add_u32 v{VT+2}, {L_RS:#x}, v{VT+16}")
                e(f"v_cmp_gt_u32 vcc, 320, v{VTID}")
                e(f"s_and_saveexec_b64 {sr(S_EX,2)}, vcc")
                e(f"ds_write_b32 v{VT+17}, v{VT}")
                e(f"s_mov_b64 exec, {sr(S_EX,2)}")
                e(f"v_cmp_gt_u32 vcc, 128, v{VTID}")
                e(f"s_and_saveexec_b64 {sr(S_EX,2)}, vcc")
                e(f"ds_write_b32 v{VT+2}, v{SP+1}")
                e(f"ds_write_b32 v{VT+2}, v{SP} offset:{L_NM - L_RS}")
                e(f"ds_write_b32 v{VT+2}, v{VT+1} offset:{L_NMR - L_RS}")
                e(f"s_mov_b64 exec, {sr(S_EX,2)}")
            if i == 32: pass
            if i in (40, 64):
                assert not pend
                pend = epi_list(0 if i == 40 else 1)
                span = 23 if i == 40 else 15
                quota = len(pend) / span; credit = 0.0
            buf = AF + (i % 3) * 8
            p._need({("v", r) for r in range(buf, buf + 8)}, None)
            work = []
            nx = 0
            if extra:
                take = max(1, -(-len(extra) // (4 - (i % 4))))
                work += extra[:take]; del extra[:take]
            if soft:
                take = max(1, -(-len(soft) // max(1, soft_dl[0] - i)))
                work += soft[:take]; del soft[:take]
            if pend:
                credit += quota
                while pend and credit >= 1.0:
                    work.append(pend.pop(0)); credit -= 1.0
            h = len(work) // 2
            nb_ = min([b for b in bar_stages if b > s] + [N1]) * 4 - i
            ndma = sum(1 for x in dq if any("buffer_load" in y for y in x))
            per_half = -(-ndma // (2 * nb_)) if ndma else 0
            mfma_step(i, 0)
            if i + 2 < nsteps: read_step(i + 2, 0)
            if blocks:
                b_ = blocks.pop()[0]
                if b_ == "side_loads": side_loads(isA)
                if b_ == "touch2": touch_w(isA, [2, 3, 4, 5], 0, 64, IRS2, SRD_WB, SU0)
                if b_ == "touch3": touch_w2(IRS2, SRD_WB, SU0)
            drain_dq(per_half)
            for x in work[:h]: emit_item(x)
            mfma_step(i, 1)
            if i + 2 < nsteps: read_step(i + 2, 1)
            drain_dq(per_half if nb_ > 1 else 999)
            for x in work[h:]: emit_item(x)
            if s == 3 and i % 4 == 3:
                assert not soft
                side["tok"] = side_store_tok[0]
            if i == 39: p.wait(lgkm=0)
        assert not pend and not extra
        stamp(6)
        a = ACC[0]
        if not isA:
            e(f"s_lshr_b32 s{S_KIDX}, s{S_AB}, 1"); e(f"s_lshl_b32 s{S_KIDX}, s{S_KIDX}, 2")
            e(f"s_and_b32 s{S_T2}, s{S_AB}, 1"); e(f"s_lshl_b32 s{S_T2}, s{S_T2}, 1")
            e(f"s_add_u32 s{S_KIDX}, s{S_KIDX}, s{S_T2}"); e(f"s_add_u32 s{S_KIDX}, s{S_KIDX}, s{S_CH}")
            e(f"s_lshl_b32 s{S_KIDX}, s{S_KIDX}, 10")
            e(f"s_lshl_b32 s{S_CCS}, s{S_CH}, 6"); e(f"s_add_u32 s{S_CCS}, s{S_CCS}, {L_CS}")
            for x in ffn_epi(a, 96, 4*256, 4*256 + 128, VT):
                for y in (x if isinstance(x, tuple) else (x,)): e(y)
        else:
            q_pre(a)
        p.wait(vm=0); p.wait(lgkm=0); p.barrier()
        for q in range(last_freed[0], N1): free.add(slot_of[("W", q)])
        cnt_add([f"s_add_u32 s{S_T}, s{S_RB}, 40"])
        pump(99, limit=9, q2=9)
        if isA:
            poll([f"s_add_u32 s{S_T}, s{S_AB}, 32"], 16)
            q_gather(0, VT)
            q_load(64, VT)
            q_mma(64, 80, [128, 160])
            q_fin([128, 160], SRD_ACT)
        run_p2(tag, slot_of, dma_tok, free, pump, N1, N2, defer, drain_dq, dq, isA)
        if "sched" in cfg.dbg: print(tag, sched_log)

    def run_p2(tag, slot_of, dma_tok, free, pump, N1, N2, defer, drain_dq, dq, isA):
        VB, ACCA, ACCB, AF2 = 0, 144, 176, 208
        VX, VAD, VXO = 232, 236, 238
        T2 = 0
        Lr = T2
        e(f"v_and_b32 v{Lr}, 63, v{VTID}")
        e(f"v_lshrrev_b32 v{T2+1}, 5, v{Lr}"); e(f"v_lshlrev_b32 v{T2+1}, 2, v{T2+1}")
        e(f"v_bfe_u32 v{T2+2}, v{Lr}, 2, 2"); e(f"v_add_u32 v{T2+1}, v{T2+1}, v{T2+2}")
        e(f"v_lshlrev_b32 v{VAD}, 7, v{T2+1}")
        e(f"v_bfe_u32 v{T2+1}, v{Lr}, 4, 1"); e(f"v_lshlrev_b32 v{T2+1}, 1, v{T2+1}")
        e(f"v_bfe_u32 v{T2+2}, v{Lr}, 1, 1"); e(f"v_add_u32 v{T2+1}, v{T2+1}, v{T2+2}")
        e(f"v_bfe_u32 v{T2+2}, v{Lr}, 3, 1"); e(f"v_lshlrev_b32 v{T2+2}, 2, v{T2+2}")
        e(f"v_xor_b32 v{T2+1}, v{T2+1}, v{T2+2}")
        e(f"v_lshl_add_u32 v{VAD}, v{T2+1}, 4, v{VAD}")
        e(f"v_and_b32 v{T2+1}, 1, v{Lr}"); e(f"v_lshl_add_u32 v{VAD}, v{T2+1}, 3, v{VAD}")
        e(f"s_lshl_b32 s{S_T}, s{S_R2}, 12"); e(f"v_add_u32 v{VAD}, s{S_T}, v{VAD}")
        e(f"v_xor_b32 v{VAD+1}, 64, v{VAD}")
        set_srd(SRD_X, S_X, 2048 * 1024)
        set_srd(SRD_M0, S_OUT, 2048 * 1024)
        e(f"v_lshrrev_b32 v{T2+1}, 3, v{VTID}"); e(f"v_lshlrev_b32 v{VXO}, 10, v{T2+1}")
        e(f"v_and_b32 v{T2+1}, 7, v{VTID}"); e(f"v_lshl_add_u32 v{VXO}, v{T2+1}, 4, v{VXO}")
        e(f"s_lshl_b32 s{S_T}, s{S_TB2}, 16"); e(f"s_lshl_b32 s{S_T2}, s{S_CB2}, 7"); e(f"s_add_u32 s{S_T}, s{S_T}, s{S_T2}")
        e(f"v_add_u32 v{VXO}, s{S_T}, v{VXO}")
        e(f"buffer_load_dwordx4 {vr(VX,4)}, v{VXO}, {sr(SRD_X,4)}, 0 offen")
        e(f"s_lshl_b32 s{S_T}, s{S_TB2}, 1"); e(f"s_add_u32 s{S_T}, s{S_T}, s{S_TH2}")
        e(f"s_mul_i32 s{S_T}, s{S_T}, {ACT_G_BYTES}")
        set_srd_off(SRD_ACT, S_WS, S_T, ACT_G_BYTES)
        S_BY, S_BS = S_COL0, S_COL1
        e(f"s_mul_i32 s{S_BY}, s{S_R2}, {28*1024}")
        e(f"s_lshl_b32 s{S_BS}, s{S_R2}, 13"); e(f"s_add_u32 s{S_BS}, s{S_BS}, {(112 - 28)*1024}")
        T2 = 240
        e(f"s_lshr_b32 s{S_T3}, s{S_TB2}, 1")
        poll([f"s_add_u32 s{S_T}, s{S_T3}, 40"], 16)
        stamp(7)
        nb = [0]
        def issue_b_upto(n):
            first = True
            while nb[0] < min(n, 36):
                i = nb[0]
                if first or i % 4 == 0: e(f"s_add_u32 s{S_T2}, s{S_BY if i < 28 else S_BS}, {(i // 4) * 4096}")
                first = False
                e(f"buffer_load_dwordx4 {vr(VB + 4*i, 4)}, v{VL16}, {sr(SRD_ACT,4)}, s{S_T2} offen offset:{(i % 4) * 1024} sc1")
                nb[0] += 1
        issue_b_upto(cfg.BLA)
        cur = dict(win=0)
        def read_a(kidx, part=None):
            st, kk = kidx // 2, kidx % 2
            sl = slot_of[("W", N1 + st)]
            win = (sl * 16384) // 65536
            if win != cur["win"]:
                d = (win - cur["win"]) * 65536
                for nt in range(2): e(f"v_add_u32 v{VAD+nt}, {d & 0xffffffff:#x}, v{VAD+nt}")
                cur["win"] = win
            off = sl * 16384 - win * 65536 + kk * 2048
            buf = AF2 + (kidx % 3) * 8
            for nt in range(2):
                if part is not None and nt != part: continue
                e(f"ds_read_b64_tr_b16 {vr(buf + 4*nt, 2)}, v{VAD+nt} offset:{off}")
                e(f"ds_read_b64_tr_b16 {vr(buf + 4*nt + 2, 2)}, v{VAD+nt} offset:{off + 1024}")
        p.wait_vm_tok(dma_tok[("W", N1)]); p.barrier()
        read_a(0); read_a(1)
        freed = [0]; late_ok = [False]
        for st in range(N2):
            if st % 2 == 0:
                need = [dma_tok[("W", N1 + q)] for q in range(st + 1, min(st + 2, N2 - 1) + 1)]
                if isA and st == 0: need.append(qz["tok"])
                if need: p.wait_vm_tok(max(need))
                p.barrier()
                if isA and st == 0: cnt_add([f"s_add_u32 s{S_T}, s{S_RB}, 56"], PA=239)
                for q in range(freed[0], st): free.add(slot_of[("W", N1 + q)])
                freed[0] = max(freed[0], st)
                assert not dq
                defer[0] = True; pump(99, q2=2); defer[0] = False
            for kk in range(2):
                kidx = 2 * st + kk
                acc = ACCA if kidx < 28 else ACCB
                buf = AF2 + (kidx % 3) * 8
                if getattr(cfg, "p2k", None) and kidx in cfg.p2k: stamp(1 + cfg.p2k.index(kidx), force=True)
                if kidx == 15:
                    e(f"s_lshr_b32 s{S_T3}, s{S_TB2}, 1"); e(f"s_add_u32 s{S_T}, s{S_T3}, 56"); e(f"s_lshl_b32 s{S_T}, s{S_T}, 7"); e(f"v_mov_b32 v{T2+1}, s{S_T}")
                    e(f"buffer_load_dword v{T2}, v{T2+1}, {sr(SRD_WS2,4)}, 0 offen sc1")
                if kidx == 19:
                    n = nid()
                    e(f"v_readfirstlane_b32 s{S_T}, v{T2}")
                    raw("s_nop 3"); raw(f"s_cmp_ge_u32 s{S_T}, 8"); raw(f"s_cbranch_scc1 L_po{n}")
                    raw(f"v_mov_b32 v239, v{T2+1}")
                    m = nid()
                    raw(f"s_mov_b32 s{S_SPIN}, 0x40000")
                    p.label(f"L_spin{m}")
                    raw(f"buffer_load_dword v{PD}, v239, {sr(SRD_WS2,4)}, 0 offen sc1"); raw("s_waitcnt vmcnt(0)")
                    raw(f"v_readfirstlane_b32 s{S_T}, v{PD}"); raw("s_nop 3")
                    raw(f"s_cmp_ge_u32 s{S_T}, 8"); raw(f"s_cbranch_scc1 L_po{n}")
                    raw(f"s_sub_u32 s{S_SPIN}, s{S_SPIN}, 1"); raw(f"s_cbranch_scc0 L_spin{m}")
                    p.label(f"L_po{n}")
                    late_ok[0] = True
                p._need({("v", r) for r in range(buf, buf + 8)} | {("v", r) for r in range(VB + 4*kidx, VB + 4*kidx + 4)}, None)
                for nt in range(2):
                    e(f"v_mfma_f32_32x32x16_bf16 {vr(acc + 16*nt, 16)}, {vr(buf + 4*nt, 4)}, {vr(VB + 4*kidx, 4)}, {'0' if kidx in (0, 28) else vr(acc + 16*nt, 16)}")
                    if kidx + 2 < 2 * N2: read_a(kidx + 2, nt)
                    drain_dq(1 if not (st % 2 == 1 and kk == 1 and nt == 1) else 999)
                issue_b_upto(min(kidx + cfg.BLA + 1, 28) if not late_ok[0] else min(36, kidx + cfg.BLA + 1))
        if getattr(cfg, "p2k", None): stamp(7, force=True)
        p.wait(lgkm=0); p.barrier()
        VW = T2
        e(f"v_and_b32 v{T2+1}, 63, v{VTID}"); e(f"v_and_b32 v{T2+2}, 31, v{T2+1}"); e(f"v_lshrrev_b32 v{T2+3}, 5, v{T2+1}")
        e(f"v_and_b32 v{T2+4}, 15, v{T2+2}"); e(f"v_xor_b32 v{T2+4}, v{T2+4}, v{T2+3}")
        e(f"v_lshlrev_b32 v{VW}, 8, v{T2+2}"); e(f"v_lshl_add_u32 v{VW}, v{T2+4}, 4, v{VW}")
        e(f"s_lshl_b32 s{S_T}, s{S_TH2}, 16"); e(f"s_lshl_b32 s{S_T2}, s{S_R2}, 13"); e(f"s_add_u32 s{S_T}, s{S_T}, s{S_T2}")
        e(f"v_add_u32 v{VW}, s{S_T}, v{VW}")
        for acc, off in ((ACCA, 0), (ACCB, 32768)):
            for nt in range(2):
                for j in range(4):
                    e(f"v_xor_b32 v{T2+5+(j&1)}, {(8*nt + 2*j) * 16}, v{VW}")
                    e(f"ds_write_b128 v{T2+5+(j&1)}, {vr(acc + 16*nt + 4*j, 4)} offset:{off}")
        p.force_wait(lgkm=0); p.barrier()
        VR = T2
        e(f"v_lshrrev_b32 v{T2+1}, 3, v{VTID}"); e(f"v_and_b32 v{T2+2}, 31, v{T2+1}"); e(f"v_lshrrev_b32 v{T2+3}, 5, v{T2+1}")
        e(f"v_lshlrev_b32 v{T2+3}, 16, v{T2+3}"); e(f"v_lshl_add_u32 v{VR}, v{T2+2}, 8, v{T2+3}")
        e(f"v_and_b32 v{T2+2}, 15, v{T2+2}"); e(f"v_and_b32 v{T2+4}, 7, v{VTID}"); e(f"v_lshlrev_b32 v{T2+4}, 1, v{T2+4}")
        e(f"v_xor_b32 v{T2+4}, v{T2+4}, v{T2+2}"); e(f"v_lshl_add_u32 v{VR}, v{T2+4}, 4, v{VR}"); e(f"v_xor_b32 v{VR+1}, 16, v{VR}")
        for src in range(8):
            b = 64 + 8*src
            e(f"ds_read_b128 {vr(b, 4)}, v{VR} offset:{src * 8192}")
            e(f"ds_read_b128 {vr(b + 4, 4)}, v{VR+1} offset:{src * 8192}")
        for i in range(8):
            e(f"v_add_f32 v{i}, v{64+i}, v{72+i}"); e(f"v_add_f32 v{16+i}, v{80+i}, v{88+i}")
        for i in range(8): e(f"v_add_f32 v{i}, v{i}, v{16+i}")
        for i in range(8):
            e(f"v_add_f32 v{32+i}, v{96+i}, v{104+i}"); e(f"v_add_f32 v{16+i}, v{112+i}, v{120+i}")
        for i in range(8): e(f"v_add_f32 v{32+i}, v{32+i}, v{16+i}")
        for i in range(8): e(f"v_mul_f32 v{40+i}, s{S_L2E}, v{i}")
        for i in range(8): e(f"v_exp_f32 v{40+i}, -v{40+i}")
        for i in range(8): e(f"v_add_f32 v{40+i}, 1.0, v{40+i}")
        for i in range(8): e(f"v_rcp_f32 v{40+i}, v{40+i}")
        for i in range(8): e(f"v_mul_f32 v{i}, v{i}, v{32+i}")
        for i in range(4):
            e(f"v_lshlrev_b32 v{48+2*i}, 16, v{VX+i}"); e(f"v_and_b32 v{49+2*i}, 0xffff0000, v{VX+i}")
        for i in range(8): e(f"v_fma_f32 v{i}, v{i}, v{40+i}, v{48+i}")
        for i in range(4): e(f"v_cvt_pk_bf16_f32 v{56+i}, v{2*i}, v{2*i+1}")
        e(f"buffer_store_dwordx4 {vr(56,4)}, v{VXO}, {sr(SRD_M0,4)}, 0 offen")
        if diag:
            p.force_wait(vm=0)
            if not (getattr(cfg, "stages", None) and len(cfg.stages) >= 8): stamp(8, force=True)
            e(f"v_cmp_eq_u32 vcc, 0, v{VTID}")
            p.force_wait(lgkm=0)
            e(f"s_and_saveexec_b64 {sr(S_EX,2)}, vcc")
            e(f"s_cbranch_execz L_ns{tag}")
            e(f"s_lshl_b32 s{S_T}, s2, 7"); e(f"s_add_u32 s{S_T}, s{S_T}, {DIAG_OFF}")
            e(f"v_mov_b32 v60, s{S_T}")
            for i in range(NSTAMP):
                e(f"v_mov_b32 v62, s{80+2*i}"); e(f"v_mov_b32 v63, s{81+2*i}")
                e(f"global_store_dwordx2 v60, v[62:63], {sr(S_WS,2)} offset:{8*i}")
                raw("s_nop 1")
            p.label(f"L_ns{tag}")
        e("s_branch L_end")

    sv = (list(p.lgkm), list(p.vm), p.vm_count, set(p.smem_pending))
    run_type(False)
    p.label("L_typeA")
    p.lgkm, p.vm, p.vm_count, p.smem_pending = list(sv[0]), list(sv[1]), sv[2], set(sv[3])
    run_type(True)
    p.label("L_end")
    raw("s_endpgm")
    p.hazards()
    return kernel_text(NAME + "_kernel", p.text(), 256, sgpr=102)

HDR = "; @launch grid=(256,1,1) block=(512,1,1) lds=163840\n.amdgcn_target \"amdgcn-amd-amdhsa--gfx950\"\n"
if __name__ == "__main__":
    c = Cfg(); c.dbg = ("sched",)
    open("f1.s", "w").write(HDR + gen(c))
    c = Cfg(); c.diag = True
    open("f1_diag.s", "w").write(HDR + gen(c))
    c = Cfg(); c.diag = True; c.dbg = ("pro",)
    open("f1_pro.s", "w").write(HDR + gen(c))
    c = Cfg(); c.diag = True; c.stages = [0, 1, 2, 3, 4, 5, 6, 7]
    open("f1_st.s", "w").write(HDR + gen(c))
    c = Cfg(); c.diag = True; c.stages = [7, 8, 10, 12, 14, 16, 18]
    open("f1_st2.s", "w").write(HDR + gen(c))
    c = Cfg(); c.diag = "clk"; c.stages = [0, 1, 2, 3, 4, 5, 6, 7]
    open("f1_stclk.s", "w").write(HDR + gen(c))
    for nm, dbg in (("noside", ("noside",)), ("nodma", ("noside", "nodma")), ("nox", ("noside", "nox"))):
        c = Cfg(); c.diag = "clk"; c.stages = [0, 1, 2, 3, 4, 5, 6, 7]; c.dbg = dbg
        open(f"f1_stclk_{nm}.s", "w").write(HDR + gen(c))
    c = Cfg(); c.diag = True; c.stages = [99]; c.p2k = [0, 6, 12, 18, 24, 28]
    open("f1_p2.s", "w").write(HDR + gen(c))
    c = Cfg(); c.diag = "clk"; c.stages = [6, 7, 8, 10, 12, 14, 16, 18]
    open("f1_st2clk.s", "w").write(HDR + gen(c))
    c = Cfg(); c.diag = True; c.stages = [6, 7, 8, 10, 12, 14, 16, 18]
    open("f1_st2.s", "w").write(HDR + gen(c))
    c = Cfg(); c.diag = "clk"; c.stages = [99]; c.p2k = [0, 6, 12, 18, 24, 28]
    open("f1_p2clk.s", "w").write(HDR + gen(c))
    c = Cfg(); c.diag = "clk"; c.stages = [0, 1, 2, 3, 4, 5, 6, 7]; c.dbg = ("hot",)
    open("f1_stclk_hot.s", "w").write(HDR + gen(c))
    c = Cfg(); c.diag = "clk"; c.stages = [6, 7, 8, 10, 12, 14, 16, 18]; c.dbg = ("hot",)
    open("f1_st2clk_hot.s", "w").write(HDR + gen(c))
    print("written")
```

```python
import sys, json
from fused import *
def make(name, diag=False, **kw):
    c = Cfg()
    for k, v in kw.items(): setattr(c, k, v)
    c.diag = diag
    open(f"dev/{name}.s", "w").write(HDR + gen(c))
if __name__ == "__main__":
    name = sys.argv[1]
    kw = {}
    for a in sys.argv[2:]:
        k, v = a.split("="); kw[k] = eval(v)
    make(name, **kw)
```
